```python
import torch

def _softmax(x, axis=-1):
    return torch.softmax(x, dim=axis)

def _gelu(x):
    return torch.nn.functional.gelu(x, approximate='tanh')

def _silu(x):
    return torch.nn.functional.silu(x)

def _sigmoid(x):
    return torch.sigmoid(x)

def _layernorm(x, axis=-1, eps=1e-05):
    m = x.mean(dim=axis, keepdim=True)
    v = x.var(dim=axis, keepdim=True, unbiased=False)
    return (x - m) / torch.sqrt(v + eps)

def _scatter_add(tgt, idx, src, axis=0):
    return tgt.clone().index_add_(axis, idx, src)

def _segment_sum(src, seg, n):
    out = torch.zeros((n,) + src.shape[1:], dtype=src.dtype)
    return out.index_add_(0, seg, src)

def _pad(x, pw):
    flat = tuple((v for pair in reversed(pw) for v in pair))
    return torch.nn.functional.pad(x, flat)
kernel_name = 'sequential_preLN__linear_kernel_hedgehog__mixer_gmlp__prompt'

def setup_inputs():

    _w = lambda a: (lambda t: t.to(torch.bfloat16) if t.is_floating_point() else t)(torch.as_tensor(a))

    def _A_setup():
        B, S, D, H = (1, 2048, 512, 32)
        Dh = D // H
        return {'x': _w((lambda *s: torch.randn(*s, dtype=torch.bfloat16) * 0.05)(B, S, D)), 'wqkv': _w((lambda *s: torch.randn(*s, dtype=torch.bfloat16) * 0.2)(D, 3 * D)), 'w_phi': _w((lambda *s: torch.randn(*s, dtype=torch.bfloat16) * 0.2)(H, Dh, Dh) * Dh ** (-0.5)), 'wo': _w((lambda *s: torch.randn(*s, dtype=torch.bfloat16) * 0.05)(D, D))}
    _A_in = _A_setup()

    def _B_setup():
        B, S, D, F = (1, 2048, 512, 1792)
        Fh = F // 2
        return {'x': _w((lambda *s: torch.randn(*s, dtype=torch.bfloat16) * 0.05)(B, S, D)), 'w_in': _w((lambda *s: torch.randn(*s, dtype=torch.bfloat16) * 0.2)(D, 2 * Fh)), 'w_sp': _w(0.01 * (lambda *s: torch.randn(*s, dtype=torch.bfloat16) * 0.2)(S, S)), 'b_sp': _w(1.0 + 0.01 * (lambda *s: torch.randn(*s, dtype=torch.bfloat16) * 0.05)(S)), 'w_out': _w((lambda *s: torch.randn(*s, dtype=torch.bfloat16) * 0.05)(Fh, D))}
    _B_in = _B_setup()
    return {'A_x': _A_in['x'], 'A_wqkv': _A_in['wqkv'], 'A_w_phi': _A_in['w_phi'], 'A_wo': _A_in['wo'], 'B_x': _B_in['x'], 'B_w_in': _B_in['w_in'], 'B_w_sp': _B_in['w_sp'], 'B_b_sp': _B_in['b_sp'], 'B_w_out': _B_in['w_out']}

def reference(A_x, A_wqkv, A_w_phi, A_wo, B_x, B_w_in, B_w_sp, B_b_sp, B_w_out):

    def _A_ref(x, wqkv, w_phi, wo):
        B, S, D = x.shape
        H = 32
        Dh = D // H
        qkv = (lambda x, *d: x.permute(*d))((x @ wqkv).reshape(B, S, 3, H, Dh), 2, 0, 3, 1, 4)
        q, k, v = (qkv[0], qkv[1], qkv[2])
        pq = torch.einsum('bhsd,hdf->bhsf', q, w_phi)
        pk = torch.einsum('bhsd,hdf->bhsf', k, w_phi)
        phi_q = torch.concatenate([_softmax(pq, axis=-1), _softmax(-pq, axis=-1)], axis=-1)
        phi_k = torch.concatenate([_softmax(pk, axis=-1), _softmax(-pk, axis=-1)], axis=-1)
        kv = torch.einsum('bhsf,bhsd->bhfd', phi_k, v)
        z = torch.einsum('bhsf->bhf', phi_k)
        num = torch.einsum('bhqf,bhfd->bhqd', phi_q, kv)
        den = torch.einsum('bhqf,bhf->bhq', phi_q, z)[..., None] + 1e-06
        o = num / den
        return (lambda x, *d: x.permute(*d))(o, 0, 2, 1, 3).reshape(B, S, D) @ wo

    def _B_ref(x, w_in, w_sp, b_sp, w_out):
        B, S, D = x.shape
        F = w_in.shape[-1]
        Fh = F // 2
        z = _gelu(torch.einsum('bsd,df->bsf', x, w_in))
        z1 = z[..., :Fh].clone()
        z2 = _layernorm(z[..., Fh:], axis=-1)
        g = torch.einsum('ts,bsf->btf', w_sp, z2) + b_sp[None, :, None]
        return torch.einsum('bsf,fd->bsd', z1 * g, w_out)
    x = A_x
    h = x + _A_ref(_layernorm(x, axis=-1), A_wqkv, A_w_phi, A_wo)
    h2 = h + _B_ref(_layernorm(h, axis=-1), B_w_in, B_w_sp, B_b_sp, B_w_out)
    return h2
```

```python
import re

REG_RE = re.compile(r'^(-|abs\()?([vas])(\d+)\)?$')
RANGE_RE = re.compile(r'^(-)?([vas])\[(\d+):(\d+)\]$')

TRANS = ('v_exp_f32', 'v_log_f32', 'v_rcp_f32', 'v_rsq_f32', 'v_sqrt_f32', 'v_sin_f32', 'v_cos_f32', 'v_rcp_iflag_f32')


def regs_of(op):
    op = op.strip()
    m = REG_RE.match(op)
    if m:
        return [(m.group(2), int(m.group(3)))]
    m = RANGE_RE.match(op)
    if m:
        return [(m.group(2), i) for i in range(int(m.group(3)), int(m.group(4)) + 1)]
    if op == 'vcc':
        return [('s', 'vcc')]
    if op == 'exec':
        return [('s', 'exec')]
    if op == 'm0':
        return [('s', 'm0')]
    return []


def R(kind, base, n=1):
    if n == 1:
        return f"{kind}{base}"
    return f"{kind}[{base}:{base + n - 1}]"


def V(b, n=1): return R('v', b, n)
def A(b, n=1): return R('a', b, n)
def S(b, n=1): return R('s', b, n)


class Ins:
    __slots__ = ('text', 'op', 'kind', 'rd', 'wr', 'tok', 'mfma_c', 'mfma_ab', 'passes', 'wide_store', 'states', 'dpp', 'special')

    def __init__(self, text):
        self.text = text
        self.tok = None
        self.special = None
        self.mfma_c = set()
        self.mfma_ab = set()
        self.passes = 0
        self.wide_store = set()
        self.states = 1
        self.dpp = False
        t = text.split(';')[0].strip()
        if t.endswith(':') or t.startswith('.') or not t:
            self.op = ''
            self.kind = 'label' if t.endswith(':') else 'none'
            self.rd = set(); self.wr = set(); self.states = 0
            return
        parts = t.split(None, 1)
        op = parts[0]
        self.op = op
        rest = parts[1] if len(parts) > 1 else ''
        ops = []
        depth = 0; cur = ''
        for ch in rest:
            if ch in '[(':
                depth += 1
            if ch in '])':
                depth -= 1
            if ch == ',' and depth == 0:
                ops.append(cur.strip()); cur = ''
            else:
                cur += ch
        if cur.strip():
            ops.append(cur.strip())
        mods = ''
        if ops:
            last = ops[-1].split(None, 1)
            ops[-1] = last[0]
            mods = last[1] if len(last) > 1 else ''
        rd = []; wr = []
        if op.startswith('v_mfma'):
            self.kind = 'mfma'
            wr = regs_of(ops[0])
            self.mfma_ab = set(regs_of(ops[1]) + regs_of(ops[2]))
            self.mfma_c = set(regs_of(ops[3]))
            rd = list(self.mfma_ab | self.mfma_c)
            self.passes = 8 if '32x32' in op else 4
        elif op.startswith('v_'):
            self.kind = 'valu'
            if op.startswith('v_permlane') and 'swap' in op:
                wr = regs_of(ops[0]) + regs_of(ops[1]); rd = list(wr)
            elif op.startswith('v_cmp'):
                wr = regs_of(ops[0]); rd = [r for o in ops[1:] for r in regs_of(o)]
            elif '_co_' in op:
                wr = regs_of(ops[0]) + regs_of(ops[1]); rd = [r for o in ops[2:] for r in regs_of(o)]
            else:
                wr = regs_of(ops[0]); rd = [r for o in ops[1:] for r in regs_of(o)]
                if op.startswith('v_fmac') or op.startswith('v_dot2c') or op.startswith('v_writelane'):
                    rd += wr
            if '_dpp' in op:
                self.dpp = True
                rd += wr
        elif op.startswith('ds_'):
            self.kind = 'ds'
            if op.startswith('ds_read') or op.startswith('ds_bpermute') or op.startswith('ds_permute') or op.startswith('ds_swizzle'):
                wr = regs_of(ops[0]); rd = [r for o in ops[1:] for r in regs_of(o)]
            else:
                rd = [r for o in ops for r in regs_of(o)]
        elif op.startswith('buffer_') or op.startswith('global_'):
            self.kind = 'vmem'
            islds = ' lds' in (' ' + mods) or 'load_lds' in op
            if op in ('buffer_inv', 'buffer_wbl2'):
                pass
            elif 'load' in op and not islds:
                wr = regs_of(ops[0]); rd = [r for o in ops[1:] for r in regs_of(o)]
            elif 'load' in op:
                rd = [r for o in ops for r in regs_of(o)] + [('s', 'm0')]
                self.special = 'ldsdma'
            elif 'atomic' in op and 'sc0' in mods.split():
                if op.startswith('global_'):
                    wr = regs_of(ops[0]); rd = [r for o in ops[1:] for r in regs_of(o)]
                else:
                    wr = regs_of(ops[0]); rd = [r for o in ops for r in regs_of(o)]
            else:
                rd = [r for o in ops for r in regs_of(o)]
                if 'dwordx3' in op or 'dwordx4' in op:
                    data = ops[0] if op.startswith('buffer_') else ops[1]
                    self.wide_store = set(regs_of(data))
        elif op.startswith('s_'):
            self.kind = 'salu'
            if op == 's_nop':
                self.states = int(ops[0]) + 1
            elif op in ('s_waitcnt', 's_barrier', 's_endpgm', 's_branch', 's_sleep', 's_setprio') or op.startswith('s_cbranch'):
                pass
            elif op.startswith('s_cmp') or op.startswith('s_bitcmp'):
                rd = [r for o in ops for r in regs_of(o)]
            elif op.startswith('s_load') or op.startswith('s_mem') or op.startswith('s_buffer_load'):
                self.kind = 'smem'
                wr = regs_of(ops[0]); rd = [r for o in ops[1:] for r in regs_of(o)]
            else:
                wr = regs_of(ops[0]); rd = [r for o in ops[1:] for r in regs_of(o)]
                if 'saveexec' in op:
                    wr += [('s', 'exec')]
        else:
            raise ValueError("unknown instruction: " + text)
        self.rd = set(rd); self.wr = set(wr)


class Asm:
    def __init__(self):
        self.ins = []
        self.ntok = 0
        self.nlab = 0

    def __call__(self, text):
        tok = None
        for line in text.strip().split('\n'):
            line = line.strip()
            if not line or line.startswith(';'):
                continue
            i = Ins(line)
            if i.kind in ('vmem', 'ds'):
                self.ntok += 1
                i.tok = self.ntok
                tok = i.tok
            self.ins.append(i)
        return tok

    def label(self, prefix='L'):
        self.nlab += 1
        return f"{prefix}_{self.nlab}"

    def wait(self, *toks):
        i = Ins('')
        i.kind = 'waittok'
        i.special = [t for t in toks if t is not None]
        self.ins.append(i)

    def _mark(self, kind):
        i = Ins(''); i.kind = kind; self.ins.append(i)

    def fork(self):
        self._mark('fork')

    def nextpath(self):
        self._mark('next')

    def join(self):
        self._mark('join')

    def ifelse(self, cond_setup, f0, f1):
        l1 = self.label('Lelse'); l2 = self.label('Ljoin')
        self(cond_setup)
        self(f"s_cbranch_scc1 {l1}")
        self.fork()
        r0 = f0()
        self(f"s_branch {l2}")
        self.nextpath()
        self(f"{l1}:")
        r1 = f1()
        self.join()
        self(f"{l2}:")
        return r0, r1

    def both(self, cond_setup, text0, text1):
        base = self.ntok
        def f1():
            self.ntok = base
            return self(text1)
        r0, r1 = self.ifelse(cond_setup, lambda: self(text0), f1)
        assert r0 == r1
        return r0

    def ifonly(self, cond_setup, f0):
        l2 = self.label('Lskip')
        self(cond_setup)
        self(f"s_cbranch_scc1 {l2}")
        self.fork()
        r0 = f0()
        self.nextpath()
        self.join()
        self(f"{l2}:")
        return r0

    def _waitcnt_pass(self):
        out = []
        st = [([], [])]
        stack = []

        def trim(lst, n):
            return lst[len(lst) - n:] if 0 < n < len(lst) else ([] if n == 0 else lst)

        def dedupe(x):
            seen = []; res = []
            for vm, lg in x:
                key = (tuple(o.tok or id(o) for o in vm), tuple(o.tok or id(o) for o in lg))
                if key not in seen:
                    seen.append(key); res.append((vm, lg))
            return res

        def apply(nv, nl):
            nonlocal st
            st = dedupe([(trim(vm, nv) if nv is not None else vm, trim(lg, nl) if nl is not None else lg) for vm, lg in st])

        def need1(lst, pred):
            idx = -1
            for k, o in enumerate(lst):
                if pred(o):
                    idx = k
            return None if idx < 0 else len(lst) - 1 - idx

        def emit_need(pred):
            nv = [n for n in (need1(vm, pred) for vm, lg in st) if n is not None]
            nl = [n for n in (need1(lg, pred) for vm, lg in st) if n is not None]
            nv = min(min(nv), 63) if nv else None
            nl = min(min(nl), 15) if nl else None
            if nl is not None and any(o.kind == 'smem' for vm, lg in st for o in lg):
                nl = 0
            parts = []
            if nv is not None: parts.append(f"vmcnt({nv})")
            if nl is not None: parts.append(f"lgkmcnt({nl})")
            if parts:
                out.append(Ins("s_waitcnt " + " ".join(parts)))
                apply(nv, nl)

        for i in self.ins:
            if i.kind == 'waittok':
                ts = set(i.special)
                emit_need(lambda o: o.tok in ts)
                continue
            if i.kind == 'fork':
                stack.append(([(list(a), list(b)) for a, b in st], []))
                out.append(i); continue
            if i.kind == 'next':
                stack[-1][1].extend(st)
                st = [(list(a), list(b)) for a, b in stack[-1][0]]
                out.append(i); continue
            if i.kind == 'join':
                _, done = stack.pop()
                st = dedupe(done + st)
                assert len(st) <= 64, "too many scoreboard histories"
                out.append(i); continue
            if i.op == 's_waitcnt':
                m = re.search(r'vmcnt\((\d+)\)', i.text)
                nv = int(m.group(1)) if m else None
                m = re.search(r'lgkmcnt\((\d+)\)', i.text)
                nl = int(m.group(1)) if m else None
                if nl and any(o.kind == 'smem' for vm, lg in st for o in lg):
                    nl = None
                apply(nv, nl)
                out.append(i)
                continue
            touched = i.rd | i.wr
            if touched:
                emit_need(lambda o: o.wr & touched)
            out.append(i)
            if i.kind == 'vmem':
                for vm, lg in st: vm.append(i)
            elif i.kind in ('ds', 'smem'):
                for vm, lg in st: lg.append(i)
        self.ins = out

    def _hazard_pass(self):
        out = []
        hists = [[]]
        stack = []

        def dist_to(pred, maxd):
            best = None
            for hist in hists:
                d = 0
                for h in reversed(hist):
                    if pred(h):
                        best = d if best is None else min(best, d)
                        break
                    d += h.states
                    if d >= maxd:
                        break
            return best

        for i in self.ins:
            if i.kind == 'fork':
                stack.append(([list(h) for h in hists], [])); continue
            if i.kind == 'next':
                stack[-1][1].extend(hists); hists = [list(h) for h in stack[-1][0]]; continue
            if i.kind == 'join':
                _, done = stack.pop(); hists = done + hists; continue
            if i.kind in ('label', 'none'):
                out.append(i)
                continue
            req = 0

            def chk(pred, n):
                nonlocal req
                d = dist_to(pred, n)
                if d is not None:
                    req = max(req, n - d)
            vr = {r for r in i.rd if r[0] in 'va'}
            vw = {r for r in i.wr if r[0] in 'va'}
            sr = {r for r in i.rd if r[0] == 's'}
            if i.kind == 'mfma':
                chk(lambda h: h.kind == 'valu' and h.wr & vr, 2)
                chk(lambda h: h.op.startswith('v_dot') and h.wr & vr, 3)
                for p, n_ab, n_c in ((4, 8, 6), (8, 12, 10)):
                    chk(lambda h: h.kind == 'mfma' and h.passes == p and h.wr & i.mfma_ab, n_ab)
                    chk(lambda h: h.kind == 'mfma' and h.passes == p and (h.wr & i.mfma_c) and not (h.wr == i.mfma_c and h.op == i.op), n_c)
                    chk(lambda h: h.kind == 'mfma' and h.passes == p and (h.wr & i.wr) and not (h.wr == i.mfma_c and h.op == i.op), n_c)
            if i.kind in ('valu', 'vmem', 'ds'):
                for p, n in ((4, 8), (8, 12)):
                    chk(lambda h: h.kind == 'mfma' and h.passes == p and h.wr & (vr | vw), n)
            if i.kind == 'valu':
                for p, n in ((4, 3), (8, 7)):
                    chk(lambda h: h.kind == 'mfma' and h.passes == p and h.mfma_c & vw, n)
                if i.dpp or i.op.startswith('v_permlane'):
                    chk(lambda h: h.kind == 'valu' and h.wr & vr, 2)
                if i.op.startswith('v_readlane') or i.op.startswith('v_readfirstlane'):
                    chk(lambda h: h.kind == 'valu' and h.wr & vr, 1)
                    chk(lambda h: h.kind == 'valu' and h.wr & sr, 4)
                if not i.op.startswith(TRANS):
                    chk(lambda h: h.op.startswith(TRANS) and h.wr & vr, 1)
                chk(lambda h: h.kind == 'valu' and h.wr & sr, 2)
                chk(lambda h: h.wide_store & vw, 2)
                chk(lambda h: 'sdwa' in h.op and h.wr & (vr | vw), 1)
                chk(lambda h: h.op.startswith('v_dot') and h.op != i.op and h.wr & (vr | vw), 3)
            if i.kind in ('vmem', 'ds'):
                chk(lambda h: h.wide_store & vw, 1)
                chk(lambda h: h.op.startswith('v_dot') and h.wr & vr, 3)
            if i.kind == 'mfma':
                chk(lambda h: h.wide_store & vw, 2)
            if i.kind == 'vmem':
                chk(lambda h: h.kind == 'valu' and h.wr & sr, 5)
                if ('s', 'm0') in i.rd:
                    chk(lambda h: h.kind == 'salu' and ('s', 'm0') in h.wr, 1)
            if i.kind == 'salu':
                chk(lambda h: h.kind == 'valu' and h.wr & sr, 1)
            while req > 0:
                n = min(req, 16)
                nop = Ins(f"s_nop {n - 1}")
                out.append(nop)
                for hist in hists: hist.append(nop)
                req -= n
            out.append(i)
            for hist in hists: hist.append(i)
            hists = [h[-24:] for h in hists]
            if len(hists) > 1:
                uniq = {}
                for h in hists: uniq[tuple(id(x) for x in h)] = h
                hists = list(uniq.values())
        self.ins = out

    def finish(self):
        self._waitcnt_pass()
        self._hazard_pass()
        lines = []
        for i in self.ins:
            if i.kind == 'label' or i.text.startswith('.'):
                lines.append(i.text)
            else:
                lines.append("    " + i.text)
        return "\n".join(lines) + "\n"
```

```python
import sys, struct, math
sys.path.insert(0, 'work')
from asmlib import *

NAME = "sequential_preLN__linear_kernel_hedgehog__mixer_gmlp__prompt"

def f2u(x):
    return struct.unpack('<I', struct.pack('<f', x))[0]
def FH(x):
    return "0x%08x" % f2u(x)

MB = 1 << 20
O_OFF = 0
HN_OFF = 2 * MB
Z2_OFF = 4 * MB
Z1_OFF = 8 * MB
Y_OFF = 12 * MB
CLR_OFF = 16 * MB
KV_OFF = CLR_OFF
KVZ_OFF = CLR_OFF + MB
ST1_OFF = KVZ_OFF + 0x10000
ST2_OFF = ST1_OFF + 0x20000
F2_OFF = ST2_OFF + 0x40000
F3_OFF = F2_OFF + 0x2000
F4B_OFF = F3_OFF + 0x2000
F5_OFF = F4B_OFF + 0x2000
F4_OFF = F5_OFF + 0x4000
TS_OFF = 18 * MB
WS_SIZE = 19 * MB

R0 = 0
RK = 65536
RV = 98304
RQ = 131072
R1F = 65536
STG = 131072
SCR = 131072 - 20480
SCR2 = 131072 - 16384
LDS_SIZE = 163840

sX_, sWQKV, sWO, sWIN, sWSP, sWOUT, sOUT, sWS, sWPHI, sBSP, sDBG = 4, 8, 12, 16, 20, 24, 28, 32, 36, 40, 44
sXC, sJ, sRB, sP, sRB64, sC, sWV, sMODE, sSPIN, sKB, sMT = range(48, 59)
sT0, sT1, sT2, sT3, sT4 = range(59, 64)
sN = 64
sROT = 72
sL = 80
sC2 = 82
sONE = 84
sSO = 86
sSP = 87
sTS = 98

def srd(b): return S(b, 4)

vLANE, vL16, vTS, vI, vG = 0, 1, 2, 3, 4
vSTG = 5
vRDA = 9
vDMA = 11
vTR = 15
vT = 19
vST = 20
vH = 24


class Gen:
    def __init__(self, prof=False, stop=None, force_slow=False):
        self.a = Asm()
        self.prof = prof
        self.stop = stop
        self.force_slow = force_slow
        self.nts = 0
        self.tsnames = []

    def ts(self, name):
        if not self.prof:
            return
        a = self.a
        if name in self.tsnames:
            idx = self.tsnames.index(name)
        else:
            idx = len(self.tsnames); self.tsnames.append(name)
        a(f"s_memrealtime {S(sTS,2)}")
        a("s_waitcnt lgkmcnt(0)")
        a(f"v_writelane_b32 v{vTS}, s{sTS}, {idx}")

    def barrier(self):
        self.a("s_waitcnt lgkmcnt(0)")
        self.a("s_barrier")

    def lst(self, text):
        slow = "\n".join(l + " sc1" if l.strip().startswith(('buffer_store', 'global_store')) else l for l in text.strip().split('\n'))
        return self.a.both(f"s_cmp_lg_u32 s{sMODE}, 0", text, slow)

    def poll(self, vaddr, vtmp, expect):
        a = self.a
        lp = a.label('Lpoll'); ld = a.label('Lpd')
        a(f"{lp}:")
        a(f"buffer_load_dword v{vtmp}, v{vaddr}, {srd(sWS)}, 0 offen sc1")
        a(f"s_sub_u32 s{sSPIN}, s{sSPIN}, 1")
        a(f"s_cbranch_scc1 {ld}")
        a(f"v_cmp_ne_u32 vcc, {expect}, v{vtmp}")
        a(f"s_cbranch_vccnz {lp}")
        a(f"{ld}:")
        a(f"s_max_i32 s{sSPIN}, s{sSPIN}, 0")
        a("s_waitcnt vmcnt(0)")

    def flag(self, soff_expr_reg):
        a = self.a
        a("s_waitcnt vmcnt(0)")
        a(f"v_mov_b32 v{vT}, 1")
        a("s_mov_b64 exec, 1")
        self.lst(f"buffer_store_dword v{vT}, off, {srd(sWS)}, s{soff_expr_reg}")
        a("s_mov_b64 exec, -1")

    def dma_voffs(self, kind, rs, t0, t1):
        a = self.a
        if kind in ('pairN', 'pairP'):
            rows = 16
            a(f"v_lshrrev_b32 v{t0}, 2, v{vLANE}")
            if kind == 'pairN':
                a(f"v_lshrrev_b32 v{t1}, 5, v{vLANE}")
            else:
                a(f"v_and_b32 v{t1}, 1, v{vG}")
            a(f"v_lshlrev_b32 v{t1}, 1, v{t1}")
            a(f"v_xor_b32 v{t1}, v{t1}, v{vLANE}")
            a(f"v_and_b32 v{t1}, 3, v{t1}")
        elif kind == 'quad':
            rows = 8
            a(f"v_lshrrev_b32 v{t0}, 3, v{vLANE}")
            a(f"v_lshlrev_b32 v{t1}, 1, v{vG}")
            a(f"v_xor_b32 v{t1}, v{t1}, v{vLANE}")
            a(f"v_and_b32 v{t1}, 7, v{t1}")
        else:
            rows = 32
            a(f"v_lshrrev_b32 v{t0}, 1, v{vLANE}")
            a(f"v_and_b32 v{t1}, 1, v{vLANE}")
        a(f"v_mul_u32_u24 v{t0}, {rs}, v{t0}")
        a(f"v_lshl_add_u32 v{vDMA}, v{t1}, 4, v{t0}")
        for u in range(1, 4):
            a(f"v_add_u32 v{vDMA+u}, {u*(rows*rs-1024)}, v{vDMA}")
        return rows * 4

    def dma_group(self, vbase, srdb, flags=""):
        tok = None
        for u in range(4):
            off = f" offset:{u*1024}" if u else ""
            tok = self.a(f"buffer_load_dwordx4 v{vbase+u}, {srd(srdb)}, s{sSO} offen{off} {flags} lds")
        return tok

    def dma_image(self, srdb, rs, rows_per_group, col_sreg, ldsbase, g0, ngroups_total, krow0=0):
        a = self.a
        per = ngroups_total // 4
        a(f"s_mul_i32 s{sSO}, s{sWV}, {per*rows_per_group*rs}")
        a(f"s_add_u32 s{sSO}, s{sSO}, s{col_sreg}")
        if krow0:
            a(f"s_add_u32 s{sSO}, s{sSO}, {krow0*rs}")
        a(f"s_mul_i32 s{sT4}, s{sWV}, {per*4096}")
        a(f"s_add_u32 m0, s{sT4}, {ldsbase}")
        tok = None
        for g in range(per):
            if g:
                a(f"s_add_u32 s{sSO}, s{sSO}, {rows_per_group*rs}")
                a(f"s_add_u32 m0, m0, 4096")
            tok = self.dma_group(vDMA, srdb)
        return tok

    def tr_addrs(self, kind, dst, ldsbase, t0, t1):
        a = self.a
        a(f"v_bfe_u32 v{t0}, v{vLANE}, 2, 2")
        a(f"v_lshl_add_u32 v{t0}, v{vG}, {3 if kind == 'pairN' else 2}, v{t0}")
        a(f"v_and_b32 v{t1}, 3, v{vLANE}")
        a(f"v_lshlrev_b32 v{t1}, 3, v{t1}")
        if kind in ('pairN', 'pairP'):
            a(f"v_lshl_add_u32 v{t1}, v{t0}, 6, v{t1}")
            a(f"v_and_b32 v{t0}, 1, v{vG}")
            a(f"v_lshl_add_u32 v{t1}, v{t0}, 5, v{t1}")
            a(f"v_add_u32 v{dst}, {ldsbase}, v{t1}")
            a(f"v_xor_b32 v{dst+1}, 32, v{dst}")
            return (256 if kind == 'pairN' else 1024), 2048
        if kind == 'quad':
            a(f"v_lshl_add_u32 v{t1}, v{t0}, 7, v{t1}")
            a(f"v_bfe_u32 v{t0}, v{t0}, 1, 2")
            a(f"v_lshl_add_u32 v{t1}, v{t0}, 5, v{t1}")
            a(f"v_add_u32 v{dst}, {ldsbase}, v{t1}")
            for t in range(1, 4):
                a(f"v_xor_b32 v{dst+t}, {32*t}, v{dst}")
            return 2048, 4096
        a(f"v_lshl_add_u32 v{t1}, v{t0}, 5, v{t1}")
        a(f"v_add_u32 v{dst}, {ldsbase}, v{t1}")
        return 512, 1024

    def stg_voffs(self, rs, t0, t1):
        a = self.a
        a(f"v_lshrrev_b32 v{t0}, 5, v{vLANE}")
        a(f"v_bfe_u32 v{t1}, v{vLANE}, 3, 2")
        a(f"v_lshl_add_u32 v{t0}, v{t0}, 3, v{t1}")
        a(f"v_mul_u32_u24 v{t0}, {rs}, v{t0}")
        a(f"v_xor_b32 v{t1}, v{vG}, v{vLANE}")
        a(f"v_and_b32 v{t1}, 7, v{t1}")
        a(f"v_lshl_add_u32 v{vSTG}, v{t1}, 4, v{t0}")
        a(f"v_xor_b32 v{t1}, 64, v{vSTG}")
        a(f"v_add_u32 v{vSTG+1}, {16*rs-1024}, v{t1}")
        a(f"v_add_u32 v{vSTG+2}, {4*rs-2048}, v{vSTG}")
        a(f"v_add_u32 v{vSTG+3}, {20*rs-3072}, v{t1}")

    def stg_rdaddr(self, base, wavestride, t0):
        a = self.a
        a(f"v_lshrrev_b32 v{t0}, 1, v{vI}")
        a(f"v_xor_b32 v{t0}, v{t0}, v{vG}")
        a(f"v_lshlrev_b32 v{t0}, 4, v{t0}")
        a(f"v_lshl_add_u32 v{t0}, v{vI}, 7, v{t0}")
        a(f"s_mul_i32 s{sT4}, s{sWV}, {wavestride}")
        a(f"s_add_u32 s{sT4}, s{sT4}, {base}")
        a(f"v_add_u32 v{vRDA}, s{sT4}, v{t0}")
        a(f"v_xor_b32 v{vRDA+1}, 64, v{vRDA}")

    def gemm(self, items, ring, nring, la, group):
        a = self.a
        assert la + group <= nring + 0 or la < nring
        toks = {}
        def rd(idx, half):
            addr, off, d2, _ = items[idx]
            r = ring + 4 * (idx % nring) + 2 * half
            toks[idx] = a(f"ds_read_b64_tr_b16 {V(r,2)}, v{addr} offset:{off + d2*half}")
        for idx in range(min(la, len(items))):
            rd(idx, 0); rd(idx, 1)
        for idx, it in enumerate(items):
            if idx % group == 0:
                last = min(idx + group, len(items)) - 1
                assert last in toks, "look-ahead smaller than wait group"
                a.wait(toks[last])
            b = V(ring + 4 * (idx % nring), 4)
            pend = [0, 1] if idx + la < len(items) else []
            ms = it[3]
            for k, m in enumerate(ms):
                a(m.format(b=b))
                if pend:
                    rd(idx + la, pend.pop(0))
            while pend:
                rd(idx + la, pend.pop(0))

    def red4(self, op, r, dst):
        a = self.a
        a(f"v_permlane32_swap_b32 v{r[0]}, v{r[1]}")
        a(f"v_permlane32_swap_b32 v{r[2]}, v{r[3]}")
        a(f"{op} v{r[0]}, v{r[0]}, v{r[1]}")
        a(f"{op} v{r[2]}, v{r[2]}, v{r[3]}")
        a(f"v_permlane16_swap_b32 v{r[0]}, v{r[2]}")
        a(f"{op} v{dst}, v{r[0]}, v{r[2]}")

    def bc4(self, r):
        a = self.a
        a(f"v_mov_b32 v{r[2]}, v{r[0]}")
        a(f"v_permlane16_swap_b32 v{r[0]}, v{r[2]}")
        a(f"v_mov_b32 v{r[1]}, v{r[0]}")
        a(f"v_mov_b32 v{r[3]}, v{r[2]}")
        a(f"v_permlane32_swap_b32 v{r[0]}, v{r[1]}")
        a(f"v_permlane32_swap_b32 v{r[2]}, v{r[3]}")

    def setup(self):
        a = self.a
        a(f"s_cmp_ge_u32 s2, 256")
        a(f"s_cbranch_scc1 L_end")
        a(f"s_load_dwordx16 s[64:79], s[0:1], 0")
        a(f"s_load_dwordx8 s[80:87], s[0:1], 64")
        a(f"v_lshrrev_b32 v1, 6, v0")
        a(f"v_and_b32 v{vLANE}, 63, v0")
        a(f"v_readfirstlane_b32 s{sWV}, v1")
        a(f"v_lshlrev_b32 v{vL16}, 4, v{vLANE}")
        a(f"v_and_b32 v{vI}, 15, v{vLANE}")
        a(f"v_lshrrev_b32 v{vG}, 4, v{vLANE}")
        a(f"v_mov_b32 v{vTS}, 0")
        a(f"s_and_b32 s{sXC}, s2, 7")
        a(f"s_lshr_b32 s{sJ}, s2, 3")
        a(f"s_lshr_b32 s{sT0}, s{sJ}, 4")
        a(f"s_lshl_b32 s{sRB}, s{sXC}, 1")
        a(f"s_add_u32 s{sRB}, s{sRB}, s{sT0}")
        a(f"s_and_b32 s{sP}, s{sJ}, 15")
        a(f"s_and_b32 s{sT0}, s{sJ}, 1")
        a(f"s_lshl_b32 s{sRB64}, s{sRB}, 1")
        a(f"s_add_u32 s{sRB64}, s{sRB64}, s{sT0}")
        a(f"s_lshr_b32 s{sC}, s{sP}, 1")
        a(f"s_lshl_b32 s{sKB}, s{sRB}, 2")
        a(f"s_add_u32 s{sKB}, s{sKB}, s{sWV}")
        a(f"s_lshl_b32 s{sMT}, s{sRB64}, 2")
        a(f"s_add_u32 s{sMT}, s{sMT}, s{sWV}")
        a(f"s_mov_b32 s{sSPIN}, 0x80000")
        a(f"s_mov_b32 s{sMODE}, 1")
        a("s_waitcnt lgkmcnt(0)")
        for (b, p, n) in ((sX_, 0, 2048*512*2), (sWQKV, 1, 512*1536*2), (sWPHI, 2, 32*16*16*2), (sWO, 3, 512*512*2),
                          (sWIN, 5, 512*1792*2), (sWSP, 6, 2048*2048*2), (sBSP, 7, 2048*2), (sWOUT, 8, 896*512*2),
                          (sOUT, 9, 2048*512*2), (sDBG, 10, 256), (sWS, 11, WS_SIZE)):
            a(f"s_mov_b32 s{b}, s{64+2*p}")
            a(f"s_and_b32 s{b+1}, s{65+2*p}, 0xffff")
            a(f"s_mov_b32 s{b+2}, {n}")
            a(f"s_mov_b32 s{b+3}, 0x20000")
        self.ts("start")
        L = math.log2(math.e)
        k = math.sqrt(2.0 / math.pi)
        self.c1 = -2.0 * k * L
        self.c2 = self.c1 * 0.044715
        a(f"s_mov_b32 s{sL}, {FH(L)}")
        a(f"s_mov_b32 s{sL+1}, {FH(L)}")
        a(f"s_mov_b32 s{sC2}, {FH(self.c2)}")
        a(f"s_mov_b32 s{sC2+1}, {FH(self.c2)}")
        a(f"s_mov_b32 s{sONE}, 1.0")
        a(f"s_mov_b32 s{sONE+1}, 1.0")
        a(f"s_mul_i32 s{sT0}, s{sC}, 3")
        a(f"s_add_u32 s{sT0}, s{sT0}, 32")
        a(f"s_and_b32 s{sT1}, s{sC}, 1")
        a(f"s_add_u32 s{sN+1}, s{sT0}, s{sT1}")
        a(f"s_add_u32 s{sN+2}, s{sN+1}, 1")
        a(f"s_xor_b32 s{sT1}, s{sT1}, 1")
        a(f"s_lshl_b32 s{sT1}, s{sT1}, 1")
        a(f"s_add_u32 s{sN}, s{sT0}, s{sT1}")
        a(f"s_lshl_b32 s{sN+3}, s{sC}, 2")
        for t in range(1, 4):
            a(f"s_add_u32 s{sN+3+t}, s{sN+3}, {t}")
        for r in range(8):
            a(f"s_add_u32 s{sT0}, s{sC}, {r}")
            a(f"s_and_b32 s{sT0}, s{sT0}, 7")
            a(f"s_lshl_b32 s{sROT+r}, s{sT0}, 11")
        a(f"s_lshl_b32 s{sSP}, s{sRB64}, 18")
        a(f"s_lshl_b32 s{sT0}, s{sWV}, 10")
        a(f"s_add_u32 s{sSP}, s{sSP}, s{sT0}")

    def norm_tiles(self, acc, cs, dst):
        a = self.a
        for t in range(2):
            for m in range(2):
                r = acc + 8*t + 4*m
                for h in range(2):
                    a(f"v_pk_fma_f32 {V(r+2*h,2)}, {V(cs+4*t+2*h,2)}, {V(vST+2*m,2)}, {V(r+2*h,2)} op_sel_hi:[1,0,1]")
        for t in range(2):
            for m in range(2):
                r = acc + 8*t + 4*m
                for h in range(2):
                    a(f"v_pk_mul_f32 {V(r+2*h,2)}, {V(r+2*h,2)}, {V(vST+2*m,2)} op_sel:[0,1] op_sel_hi:[1,1]")
        for t in range(2):
            for m in range(2):
                r = acc + 8*t + 4*m
                for h in range(2):
                    a(f"v_cvt_pk_bf16_f32 v{dst+2*(2*t+m)+h}, v{r+2*h}, v{r+2*h+1}")

    def softmax(self, kb, wphi, p, ep, red):
        a = self.a
        for u in range(4):
            a(f"v_mfma_f32_16x16x16_bf16 {V(p+4*u,4)}, {V(wphi+2*(u>>1),2)}, {V(kb+2*u,2)}, 0")
        for u in range(4):
            r = p + 4*u
            a(f"v_max3_f32 v{red+2*u}, v{r}, v{r+1}, v{r+2}")
            a(f"v_max3_f32 v{red+2*u+1}, -v{r}, -v{r+1}, -v{r+2}")
        for u in range(4):
            r = p + 4*u
            a(f"v_max_f32 v{red+2*u}, v{red+2*u}, v{r+3}")
            a(f"v_max_f32_e64 v{red+2*u+1}, v{red+2*u+1}, -v{r+3}")
        g0 = [red, red+1, red+2, red+3]; g1 = [red+4, red+5, red+6, red+7]
        self.red4("v_max_f32", g0, g0[0]); self.red4("v_max_f32", g1, g1[0])
        a(f"v_mul_f32 v{g0[0]}, s{sL}, v{g0[0]}")
        a(f"v_mul_f32 v{g1[0]}, s{sL}, v{g1[0]}")
        self.bc4(g0); self.bc4(g1)
        for u in range(4):
            for h in range(2):
                a(f"v_pk_fma_f32 {V(ep+4*u+2*h,2)}, {V(p+4*u+2*h,2)}, {S(sL,2)}, {V(red+2*u,2)} op_sel_hi:[1,1,0] neg_lo:[0,0,1] neg_hi:[0,0,1]")
            for h in range(2):
                a(f"v_pk_fma_f32 {V(p+4*u+2*h,2)}, {V(p+4*u+2*h,2)}, {S(sL,2)}, {V(red+2*u,2)} op_sel:[0,0,1] op_sel_hi:[1,1,1] neg_lo:[1,0,1] neg_hi:[1,0,1]")
        for k in range(16):
            a(f"v_exp_f32 v{ep+k}, v{ep+k}")
            a(f"v_exp_f32 v{p+k}, v{p+k}")
        for u in range(4):
            a(f"v_add_f32 v{red+2*u}, v{ep+4*u}, v{ep+4*u+1}")
            a(f"v_add_f32 v{red+2*u+1}, v{p+4*u}, v{p+4*u+1}")
        for k in (2, 3):
            for u in range(4):
                a(f"v_add_f32 v{red+2*u}, v{red+2*u}, v{ep+4*u+k}")
                a(f"v_add_f32 v{red+2*u+1}, v{red+2*u+1}, v{p+4*u+k}")
        self.red4("v_add_f32", g0, g0[0]); self.red4("v_add_f32", g1, g1[0])
        a(f"v_rcp_f32 v{g0[0]}, v{g0[0]}")
        a(f"v_rcp_f32 v{g1[0]}, v{g1[0]}")
        self.bc4(g0); self.bc4(g1)
        for u in range(4):
            for h in range(2):
                a(f"v_pk_mul_f32 {V(ep+4*u+2*h,2)}, {V(ep+4*u+2*h,2)}, {V(red+2*u,2)} op_sel_hi:[1,0]")
                a(f"v_pk_mul_f32 {V(p+4*u+2*h,2)}, {V(p+4*u+2*h,2)}, {V(red+2*u,2)} op_sel:[0,1] op_sel_hi:[1,1]")

    def p1(self):
        a = self.a
        vA = 128; vCS = 40; vONES = 24; vID = 32; vWP = 34
        for k in range(4):
            a(f"v_mov_b32 v{28+k}, -1")
        a(f"s_lshl_b32 s{sT0}, s2, 13")
        a(f"s_lshl_b32 s{sT1}, s{sWV}, 11")
        a(f"s_add_u32 s{sT0}, s{sT0}, s{sT1}")
        a(f"s_add_u32 s{sT0}, s{sT0}, {CLR_OFF}")
        a(f"buffer_store_dwordx4 {V(28,4)}, v{vL16}, {srd(sWS)}, s{sT0} offen sc1")
        a(f"buffer_store_dwordx4 {V(28,4)}, v{vL16}, {srd(sWS)}, s{sT0} offen offset:1024 sc1")
        rpg = self.dma_voffs('pairN', 3072, 19, 20)
        a(f"s_lshl_b32 s{sT0}, s{sP}, 6")
        a(f"s_add_u32 s{sT1}, s{sT0}, 1024")
        self.dma_image(sWQKV, 3072, rpg, sT1, RK, 0, 8)
        a(f"s_add_u32 s{sT1}, s{sT0}, 2048")
        tkv = self.dma_image(sWQKV, 3072, rpg, sT1, RV, 0, 8)
        self.stg_voffs(1024, 19, 20)
        def xround(r):
            a(f"s_lshl_b32 s{sSO}, s{sKB}, 15")
            if r:
                a(f"s_add_u32 s{sSO}, s{sSO}, {512*r}")
            a(f"s_lshl_b32 m0, s{sWV}, 14")
            toks = []
            for b in range(4):
                if b:
                    a(f"s_add_u32 s{sSO}, s{sSO}, 128")
                    a(f"s_add_u32 m0, m0, 4096")
                toks.append(self.dma_group(vSTG, sX_))
            return toks
        tx0 = xround(0)
        a(f"v_lshlrev_b32 v19, 7, v{vG}")
        a(f"v_lshl_add_u32 v19, v{vI}, 1, v19")
        a(f"s_lshl_b32 s{sT1}, s{sP}, 10")
        for t in range(2):
            for j in range(4):
                a(f"buffer_load_ushort v{56+4*t+j}, v19, {srd(sWPHI)}, s{sT1} offen offset:{512*t+32*j}")
        for k in range(4):
            a(f"v_mov_b32 v{vONES+k}, 0x3f803f80")
        a(f"v_lshlrev_b32 v19, 2, v{vG}")
        a(f"v_sub_u32 v19, v{vI}, v19")
        a(f"v_mov_b32 v20, 0x3f80")
        a(f"v_mov_b32 v21, 0x3f800000")
        for h in range(2):
            a(f"v_cmp_eq_u32 vcc, {2*h}, v19")
            a(f"v_cndmask_b32 v{vID+h}, 0, v20, vcc")
            a(f"v_cmp_eq_u32 vcc, {2*h+1}, v19")
            a(f"v_cndmask_b32 v{vID+h}, v{vID+h}, v21, vcc")
        d2, kst = self.tr_addrs('pairN', vTR, RK, 19, 20)
        self.stg_rdaddr(R0, 16384, 19)
        a.wait(tkv)
        a("s_barrier")
        self.ts("w_ready")
        def arrive():
            a(f"s_getreg_b32 s{sT0}, hwreg(HW_REG_XCC_ID)")
            a(f"s_and_b32 s{sT0}, s{sT0}, 7")
            a(f"s_lshl_b32 s{sT0}, s{sT0}, 3")
            a(f"s_mov_b64 {S(sT1,2)}, 1")
            a(f"s_lshl_b64 {S(sT1,2)}, {S(sT1,2)}, s{sT0}")
            a(f"v_mov_b32 v20, s{sT1}")
            a(f"v_mov_b32 v21, s{sT2}")
            a(f"s_lshl_b32 s{sT0}, s{sXC}, 5")
            a("s_mov_b64 exec, 1")
            a(f"buffer_atomic_add_x2 {V(20,2)}, off, {srd(sDBG)}, s{sT0}")
            a("s_mov_b64 exec, -1")
        assert sT1 % 2 == 0
        a.ifonly(f"s_cmp_lg_u32 s{sWV}, 0", arrive)
        items = []
        for ks in range(16):
            for u in range(4):
                c = V(vCS+4*u, 4) if ks else "0"
                items.append((vTR + (u & 1), ks*kst + (u >> 1)*32768, d2,
                              [f"v_mfma_f32_16x16x32_bf16 {V(vCS+4*u,4)}, {{b}}, {V(vONES,4)}, {c}"]))
        self.gemm(items, 96, 8, 6, 2)
        for t in range(2):
            for h in range(2):
                a(f"v_lshl_or_b32 v{vWP+2*t+h}, v{56+4*t+2*h+1}, 16, v{56+4*t+2*h}")
        def xread(r, toks):
            for b in range(4):
                a.wait(toks[b])
                for k2 in range(2):
                    for m in range(2):
                        ks = 8*r + 2*b + k2
                        a(f"ds_read_b128 {V(vA+8*ks+4*m,4)}, v{vRDA+k2} offset:{b*4096+m*2048}")
        xread(0, tx0)
        a("s_waitcnt lgkmcnt(0)")
        tx1 = xround(1)
        a(f"s_lshl_b32 s{sT0}, s{sP}, 6")
        tq = self.dma_image(sWQKV, 3072, rpg, sT0, RQ, 0, 8)
        for k in range(4):
            a(f"v_mov_b32 v{28+k}, 0")
        def stats(r):
            for ks in range(8*r, 8*r+8):
                for k in range(4):
                    for m in range(2):
                        x = vA + 8*ks + 4*m + k
                        a(f"v_dot2c_f32_bf16 v{28+2*m}, v{x}, v{vONES}")
                        a(f"v_dot2c_f32_bf16 v{29+2*m}, v{x}, v{x}")
        def kvgemm(r):
            items = []
            for ks in range(8*r, 8*r+8):
                for u in range(4):
                    ms = []
                    for m in range(2):
                        d = V(64+8*u+4*m, 4)
                        ms.append(f"v_mfma_f32_16x16x32_bf16 {d}, {{b}}, {V(vA+8*ks+4*m,4)}, {d if ks else 0}")
                    items.append((vTR + (u & 1), ks*kst + (u >> 1)*32768, d2, ms))
            self.gemm(items, 96, 8, 5, 2)
        stats(0)
        kvgemm(0)
        self.ts("kv_half")
        xread(1, tx1)
        a("s_waitcnt lgkmcnt(0)")
        rpg = self.dma_voffs('quad', 1024, 19, 20)
        a(f"s_lshl_b32 s{sT0}, s{sC}, 7")
        self.two = self.dma_image(sWO, 1024, rpg, sT0, R0, 0, 16)
        stats(1)
        kvgemm(1)
        self.ts("kv_gemm")
        g = [28, 29, 30, 31]
        self.red4("v_add_f32", g, 28)
        self.bc4(g)
        for m in range(2):
            a(f"v_mul_f32 v{vST+2*m}, {FH(-1.0/512)}, v{28+2*m}")
            a(f"v_mul_f32 v{29+2*m}, {FH(1.0/512)}, v{29+2*m}")
        for m in range(2):
            a(f"v_fma_f32 v{29+2*m}, -v{vST+2*m}, v{vST+2*m}, v{29+2*m}")
        for m in range(2):
            a(f"v_max_f32 v{29+2*m}, 0, v{29+2*m}")
        for m in range(2):
            a(f"v_add_f32 v{29+2*m}, {FH(1e-5)}, v{29+2*m}")
        for m in range(2):
            a(f"v_rsq_f32 v{vST+2*m+1}, v{29+2*m}")
        self.norm_tiles(80, vCS+8, 96)
        for u in range(4):
            a(f"v_mfma_f32_16x16x16_bf16 {V(80+4*u,4)}, {V(96+2*u,2)}, {V(vID,2)}, 0")
        self.norm_tiles(64, vCS, 112)
        for u in range(4):
            for h in range(2):
                a(f"v_cvt_pk_bf16_f32 v{104+2*u+h}, v{80+4*u+2*h}, v{80+4*u+2*h+1}")
        self.softmax(112, vWP, 64, 80, 120)
        for base in (80, 64):
            for u in range(4):
                for h in range(2):
                    a(f"v_cvt_pk_bf16_f32 v{base+4*u+h}, v{base+4*u+2*h}, v{base+4*u+2*h+1}")
        for u in range(4):
            a(f"v_mfma_f32_16x16x16_bf16 {V(40+4*u,4)}, {V(80+4*u,2)}, {V(vID,2)}, 0")
            a(f"v_mfma_f32_16x16x16_bf16 {V(112+4*u,4)}, {V(64+4*u,2)}, {V(vID,2)}, 0")
        for sg, base in ((0, 40), (1, 112)):
            for t in range(2):
                for m in range(2):
                    for h in range(2):
                        r = base + 4*(2*t+m) + 2*h
                        a(f"v_cvt_pk_bf16_f32 v{64+4*(2*t+sg)+2*m+h}, v{r}, v{r+1}")
        for qd in range(4):
            a(f"v_mfma_f32_16x16x32_bf16 {V(80+4*qd,4)}, {V(64+4*qd,4)}, {V(104+4*(qd>>1),4)}, 0")
            a(f"v_mfma_f32_16x16x32_bf16 {V(112+4*qd,4)}, {V(64+4*qd,4)}, {V(vONES,4)}, 0")
        self.ts("k_epi")
        def check():
            lp = a.label('Linit'); ld = a.label('Linitd')
            a(f"v_and_b32 v19, 7, v{vLANE}")
            a(f"v_lshlrev_b32 v19, 5, v19")
            a(f"{lp}:")
            a(f"buffer_load_dwordx2 {V(40,2)}, v19, {srd(sDBG)}, 0 offen sc1")
            a(f"s_sub_u32 s{sSPIN}, s{sSPIN}, 1")
            a(f"s_cbranch_scc1 {ld}")
            a(f"v_sad_u8 v42, v40, 0, 0")
            a(f"v_sad_u8 v42, v41, 0, v42")
            a(f"v_cmp_ne_u32 vcc, 32, v42")
            a(f"s_cbranch_vccnz {lp}")
            a(f"{ld}:")
            a(f"s_max_i32 s{sSPIN}, s{sSPIN}, 0")
            a("s_waitcnt vmcnt(0)")
            a(f"v_or_b32 v40, v40, v41")
            a(f"v_and_b32 v40, 0x20202020, v40")
            a(f"v_readlane_b32 s{sT0}, v40, s{sXC}")
            a(f"s_cmp_eq_u32 s{sT0}, 0")
            a(f"s_cselect_b32 s{sMODE}, 1, 0")
        a.ifonly(f"s_cmp_lg_u32 s{sWV}, 0", check)
        a.wait(tq)
        self.barrier()
        a(f"s_lshl_b32 s{sT0}, s{sWV}, 12")
        a(f"s_add_u32 s{sT0}, s{sT0}, {SCR}")
        a(f"v_add_u32 v19, s{sT0}, v{vL16}")
        for qd in range(4):
            a(f"ds_write_b128 v19, {V(80+4*qd,4)} offset:{qd*1024}")
        a(f"s_lshl_b32 s{sT0}, s{sWV}, 8")
        a(f"s_add_u32 s{sT0}, s{sT0}, {SCR+16384}")
        a(f"v_lshl_add_u32 v38, v{vG}, 4, s{sT0}")
        a(f"s_mov_b32 exec_lo, 0x00010001")
        a(f"s_mov_b32 exec_hi, 0x00010001")
        for qd in range(4):
            a(f"ds_write_b128 v38, {V(112+4*qd,4)} offset:{qd*64}")
        a("s_mov_b64 exec, -1")
        a(f"v_mov_b32 v38, {SCR+17408}")
        a(f"v_mov_b32 v39, s{sMODE}")
        a.ifonly(f"s_cmp_lg_u32 s{sWV}, 0", lambda: a(f"ds_write_b32 v38, v39"))
        self.barrier()
        a(f"ds_read_b32 v39, v38")
        a(f"s_lshl_b32 s{sT0}, s{sWV}, 10")
        a(f"s_add_u32 s{sT0}, s{sT0}, {SCR}")
        a(f"v_add_u32 v19, s{sT0}, v{vL16}")
        for w in range(4):
            a(f"ds_read_b128 {V(80+4*w,4)}, v19 offset:{w*4096}")
        a(f"s_lshl_b32 s{sT0}, s{sWV}, 6")
        a(f"s_add_u32 s{sT0}, s{sT0}, {SCR+16384}")
        a(f"v_lshl_add_u32 v38, v{vG}, 4, s{sT0}")
        for w in range(4):
            a(f"ds_read_b128 {V(112+4*w,4)}, v38 offset:{w*256}")
        a(f"v_readfirstlane_b32 s{sMODE}, v39")
        if self.force_slow:
            a(f"s_mov_b32 s{sMODE}, 1")
        for base in (80, 112):
            for h in range(2):
                a(f"v_pk_add_f32 {V(base+2*h,2)}, {V(base+2*h,2)}, {V(base+4+2*h,2)}")
                a(f"v_pk_add_f32 {V(base+8+2*h,2)}, {V(base+8+2*h,2)}, {V(base+12+2*h,2)}")
            for h in range(2):
                a(f"v_pk_add_f32 {V(base+2*h,2)}, {V(base+2*h,2)}, {V(base+8+2*h,2)}")
        a(f"s_lshl_b32 s{sT0}, s{sP}, 2")
        a(f"s_add_u32 s{sT0}, s{sT0}, s{sWV}")
        a(f"s_lshl_b32 s{sT0}, s{sT0}, 4")
        a(f"s_add_u32 s{sT1}, s{sT0}, s{sRB}")
        a(f"s_lshl_b32 s{sT2}, s{sT1}, 10")
        a(f"s_add_u32 s{sT2}, s{sT2}, {KV_OFF}")
        a(f"buffer_store_dwordx4 {V(80,4)}, v{vL16}, {srd(sWS)}, s{sT2} offen sc1")
        a(f"s_lshl_b32 s{sT2}, s{sT1}, 6")
        a(f"s_add_u32 s{sT2}, s{sT2}, {KVZ_OFF}")
        a(f"v_lshlrev_b32 v38, 4, v{vG}")
        a(f"s_mov_b32 exec_lo, 0x00010001")
        a(f"s_mov_b32 exec_hi, 0x00010001")
        a(f"buffer_store_dwordx4 {V(112,4)}, v38, {srd(sWS)}, s{sT2} offen sc1")
        a("s_mov_b64 exec, -1")
        self.ts("kv_pub")
        a(f"v_add_u32 v{vTR}, {RQ-RK}, v{vTR}")
        a(f"v_add_u32 v{vTR+1}, {RQ-RK}, v{vTR+1}")
        items = []
        for ks in range(16):
            for t in range(2):
                ms = []
                for m in range(2):
                    d = V(64+8*t+4*m, 4)
                    ms.append(f"v_mfma_f32_16x16x32_bf16 {d}, {{b}}, {V(vA+8*ks+4*m,4)}, {d if ks else 0}")
                d = V(vCS+4*t, 4)
                ms.append(f"v_mfma_f32_16x16x32_bf16 {d}, {{b}}, {V(vONES,4)}, {d if ks else 0}")
                items.append((vTR + t, ks*kst, d2, ms))
        self.gemm(items, 84, 6, 4, 2)
        self.ts("q_gemm")
        self.norm_tiles(64, vCS, 112)
        self.softmax(112, vWP, 64, 80, 120)
        for u in range(4):
            for h in range(2):
                a(f"v_cvt_pk_bf16_f32 v{96+4*u+h}, v{80+4*u+2*h}, v{80+4*u+2*h+1}")
                a(f"v_cvt_pk_bf16_f32 v{96+4*u+2+h}, v{64+4*u+2*h}, v{64+4*u+2*h+1}")
        self.ts("q_epi")
        lp = a.label('Lkv'); ld = a.label('Lkvd')
        a(f"v_lshlrev_b32 v38, 4, v{vG}")
        a(f"v_lshl_add_u32 v38, v{vI}, 6, v38")
        a(f"s_lshl_b32 s{sT1}, s{sT0}, 6")
        a(f"s_add_u32 s{sT1}, s{sT1}, {KVZ_OFF}")
        a(f"s_lshl_b32 s{sT0}, s{sT0}, 10")
        a(f"s_add_u32 s{sT0}, s{sT0}, {KV_OFF}")
        a(f"{lp}:")
        a(f"buffer_load_dwordx4 {V(192,4)}, v38, {srd(sWS)}, s{sT1} offen sc1")
        a(f"s_mov_b32 s{sT2}, s{sT0}")
        for rb in range(16):
            if rb and rb % 4 == 0:
                a(f"s_add_u32 s{sT2}, s{sT2}, 4096")
            a(f"buffer_load_dwordx4 {V(128+4*rb,4)}, v{vL16}, {srd(sWS)}, s{sT2} offen offset:{(rb%4)*1024} sc1")
        a(f"s_sub_u32 s{sSPIN}, s{sSPIN}, 16")
        a(f"s_cbranch_scc1 {ld}")
        a(f"v_max_u32 v39, v192, v193")
        a(f"v_max3_u32 v39, v39, v194, v195")
        for k in range(32):
            a(f"v_max3_u32 v39, v39, v{128+2*k}, v{129+2*k}")
        a(f"v_cmp_eq_u32 vcc, -1, v39")
        a(f"s_cbranch_vccnz {lp}")
        a(f"{ld}:")
        a(f"s_max_i32 s{sSPIN}, s{sSPIN}, 0")
        a("s_waitcnt vmcnt(0)")
        n = 16
        while n > 1:
            n //= 2
            for k in range(n):
                for h in range(2):
                    a(f"v_pk_add_f32 {V(128+4*k+2*h,2)}, {V(128+4*k+2*h,2)}, {V(128+4*(k+n)+2*h,2)}")
        for rot in (8, 4, 2, 1):
            for k in range(4):
                a(f"v_add_f32_dpp v{192+k}, v{192+k}, v{192+k} row_ror:{rot} row_mask:0xf bank_mask:0xf")
        for h in range(2):
            a(f"v_cvt_pk_bf16_f32 v{128+h}, v{128+2*h}, v{129+2*h}")
        for h in range(2):
            a(f"v_cvt_pk_bf16_f32 v{130+h}, v{192+2*h}, v{193+2*h}")
        self.ts("kv_gath")
        a(f"s_lshl_b32 s{sT0}, s{sWV}, 10")
        a(f"s_add_u32 s{sT0}, s{sT0}, {RK}")
        a(f"v_add_u32 v19, s{sT0}, v{vL16}")
        a(f"ds_write_b128 v19, {V(128,4)}")
        self.barrier()
        a(f"v_add_u32 v19, {RK}, v{vL16}")
        for t in range(2):
            for sg in range(2):
                a(f"ds_read_b64 {V(132+4*t+2*sg,2)}, v19 offset:{(2*t+sg)*1024}")
                a(f"ds_read_b64 {V(140+4*t+2*sg,2)}, v19 offset:{(2*t+sg)*1024+8}")
        for u in range(4):
            a(f"v_mfma_f32_16x16x32_bf16 {V(80+4*u,4)}, {V(140+4*(u>>1),4)}, {V(96+4*u,4)}, 0")
        for u in range(4):
            a(f"v_mfma_f32_16x16x32_bf16 {V(64+4*u,4)}, {V(132+4*(u>>1),4)}, {V(96+4*u,4)}, 0")
        for u in range(4):
            a(f"v_add_f32 v{80+4*u}, {FH(1e-6)}, v{80+4*u}")
        for u in range(4):
            a(f"v_rcp_f32 v{80+4*u}, v{80+4*u}")
        for u in range(4):
            for h in range(2):
                a(f"v_pk_mul_f32 {V(64+4*u+2*h,2)}, {V(64+4*u+2*h,2)}, {V(80+4*u,2)} op_sel_hi:[1,0]")
        for t in range(2):
            for m in range(2):
                for h in range(2):
                    r = 64 + 4*(2*t+m) + 2*h
                    a(f"v_cvt_pk_bf16_f32 v{112+4*m+2*t+h}, v{r}, v{r+1}")
        a(f"s_lshl_b32 s{sT0}, s{sKB}, 15")
        a(f"s_lshl_b32 s{sT1}, s{sP}, 10")
        a(f"s_add_u32 s{sT0}, s{sT0}, s{sT1}")
        a(f"s_add_u32 s{sT1}, s{sT0}, {O_OFF+16384}")
        if O_OFF:
            a(f"s_add_u32 s{sT0}, s{sT0}, {O_OFF}")
        self.lst(f"buffer_store_dwordx4 {V(112,4)}, v{vL16}, {srd(sWS)}, s{sT0} offen\n"
                 f"buffer_store_dwordx4 {V(116,4)}, v{vL16}, {srd(sWS)}, s{sT1} offen")
        a(f"s_lshl_b32 s{sT0}, s{sKB}, 7")
        a(f"s_lshl_b32 s{sT1}, s{sP}, 2")
        a(f"s_add_u32 s{sT0}, s{sT0}, s{sT1}")
        a(f"s_add_u32 s{sT0}, s{sT0}, {F2_OFF}")
        self.flag(sT0)
        self.ts("o_pub")

    def win_part(self, first):
        a = self.a
        base = R1F if first else R0
        colb = 1792 if first else 0
        def quad():
            rpg = self.dma_voffs('quad', 3584, 19, 38)
            a(f"s_lshl_b32 s{sT0}, s{sN+3}, 5")
            if colb:
                a(f"s_add_u32 s{sT0}, s{sT0}, {colb}")
            return self.dma_image(sWIN, 3584, rpg, sT0, base, 0, 16)
        def triple():
            rpg = self.dma_voffs('pairP', 3584, 19, 38)
            a(f"s_lshl_b32 s{sT0}, s{sN+1}, 5")
            if colb:
                a(f"s_add_u32 s{sT0}, s{sT0}, {colb}")
            self.dma_image(sWIN, 3584, rpg, sT0, base, 0, 8)
            rpg = self.dma_voffs('single', 3584, 19, 38)
            a(f"s_lshl_b32 s{sT0}, s{sN}, 5")
            if colb:
                a(f"s_add_u32 s{sT0}, s{sT0}, {colb}")
            return self.dma_image(sWIN, 3584, rpg, sT0, base + 32768, 0, 4)
        if first:
            return a.ifelse(f"s_bitcmp1_b32 s{sP}, 0", quad, triple)
        return a.ifelse(f"s_bitcmp1_b32 s{sP}, 0", triple, quad)

    def wsp_setup(self):
        self.stg_voffs(4096, 19, 38)
        self.stg_rdaddr(STG, 8192, 19)

    def wsp_issue(self, r):
        a = self.a
        a(f"s_lshr_b32 s{sSO}, s{sROT+r}, 4")
        a(f"s_add_u32 s{sSO}, s{sSO}, s{sSP}")
        a(f"s_lshl_b32 s{sT4}, s{sWV}, 13")
        a(f"s_add_u32 m0, s{sT4}, {STG}")
        self.dma_group(vSTG, sWSP)
        a(f"s_add_u32 s{sSO}, s{sSO}, {32*4096}")
        a(f"s_add_u32 m0, m0, 4096")
        return self.dma_group(vSTG, sWSP)

    def wsp_read(self, r, tok):
        a = self.a
        a.wait(tok)
        t = None
        for k2 in range(2):
            for mt in range(4):
                t = a(f"ds_read_b128 {A(32*r+16*k2+4*mt,4)}, v{vRDA+k2} offset:{(mt>>1)*4096+(mt&1)*2048}")
        return t

    def rowoff(self, dst, t0):
        a = self.a
        a(f"v_lshrrev_b32 v{t0}, 2, v{vI}")
        a(f"v_lshlrev_b32 v{t0}, 3, v{t0}")
        a(f"v_and_or_b32 v{t0}, v{vI}, 3, v{t0}")
        a(f"s_lshr_b32 s{sT3}, s{sMT}, 1")
        a(f"s_lshl_b32 s{sT3}, s{sT3}, 5")
        a(f"s_and_b32 s{sT4}, s{sMT}, 1")
        a(f"s_lshl_b32 s{sT4}, s{sT4}, 2")
        a(f"s_add_u32 s{sT3}, s{sT3}, s{sT4}")
        a(f"v_add_u32 v{dst}, s{sT3}, v{t0}")

    def p2a(self):
        a = self.a
        vA = 128; acc = 64
        self.barrier()
        self.twin1 = self.win_part(True)
        self.wsp_setup()
        self.rowoff(38, 19)
        a(f"v_lshlrev_b32 v38, 10, v38")
        a(f"v_lshl_add_u32 v38, v{vG}, 3, v38")
        a(f"s_lshl_b32 s{sT0}, s{sC}, 7")
        for t in range(4):
            a(f"buffer_load_dwordx2 {V(vH+2*t,2)}, v38, {srd(sX_)}, s{sT0} offen offset:{32*t}")
        d2, kst = self.tr_addrs('quad', vTR, R0, 19, 38)
        a(f"s_lshr_b32 s{sT0}, s{sMT}, 1")
        a(f"s_lshl_b32 s{sT0}, s{sT0}, 7")
        a(f"s_add_u32 s{sT0}, s{sT0}, {F2_OFF}")
        a(f"v_lshl_add_u32 v38, v{vI}, 2, s{sT0}")
        self.poll(38, 39, 1)
        self.ts("o_rdy")
        a(f"s_lshl_b32 s{sT0}, s{sMT}, 14")
        if O_OFF:
            a(f"s_add_u32 s{sT0}, s{sT0}, {O_OFF}")
        for ks in range(16):
            if ks and ks % 4 == 0:
                a(f"s_add_u32 s{sT0}, s{sT0}, 4096")
            a(f"buffer_load_dwordx4 {V(vA+4*ks,4)}, v{vL16}, {srd(sWS)}, s{sT0} offen offset:{(ks%4)*1024} sc1")
        items = []
        for ks in range(16):
            for t in range(4):
                d = V(acc+4*t, 4)
                items.append((vTR + t, ks*kst, d2, [f"v_mfma_f32_16x16x32_bf16 {d}, {{b}}, {V(vA+4*ks,4)}, {d if ks else 0}"]))
        self.gemm(items, 192, 12, 7, 4)
        self.ts("h_gemm")
        for t in range(4):
            for h in range(2):
                a(f"v_lshlrev_b32 v{80+4*t+2*h}, 16, v{vH+2*t+h}")
                a(f"v_and_b32 v{81+4*t+2*h}, 0xffff0000, v{vH+2*t+h}")
        for k in range(8):
            a(f"v_pk_add_f32 {V(acc+2*k,2)}, {V(acc+2*k,2)}, {V(80+2*k,2)}")
        a(f"v_pk_add_f32 {V(80,2)}, {V(acc,2)}, {V(acc+2,2)}")
        a(f"v_pk_mul_f32 {V(82,2)}, {V(acc,2)}, {V(acc,2)}")
        a(f"v_pk_fma_f32 {V(82,2)}, {V(acc+2,2)}, {V(acc+2,2)}, {V(82,2)}")
        for k in range(2, 8):
            a(f"v_pk_add_f32 {V(80,2)}, {V(80,2)}, {V(acc+2*k,2)}")
            a(f"v_pk_fma_f32 {V(82,2)}, {V(acc+2*k,2)}, {V(acc+2*k,2)}, {V(82,2)}")
        a(f"v_add_f32 v80, v80, v81")
        a(f"v_add_f32 v81, v82, v83")
        self.allred2(80, 81, 82)
        a(f"v_max_f32 v81, 0, v81")
        a(f"s_lshl_b32 s{sT0}, s{sMT}, 10")
        a(f"s_add_u32 s{sT0}, s{sT0}, {ST1_OFF}")
        a(f"s_lshl_b32 s{sT1}, s{sC}, 3")
        a(f"s_add_u32 s{sT1}, s{sT1}, s{sT0}")
        a(f"v_lshlrev_b32 v38, 6, v{vI}")
        a(f"s_mov_b64 exec, 0xffff")
        self.lst(f"buffer_store_dwordx2 {V(80,2)}, v38, {srd(sWS)}, s{sT1} offen")
        a(f"s_mov_b64 exec, -1")
        a(f"v_lshl_add_u32 v38, v{vG}, 4, v38")
        for k in range(8):
            a(f"v_cvt_pk_bf16_f32 v{vH+k}, v{acc+2*k}, v{acc+2*k+1}")
        lp = a.label('Lst1'); ld = a.label('Lst1d')
        a(f"{lp}:")
        a(f"buffer_load_dwordx4 {V(84,4)}, v38, {srd(sWS)}, s{sT0} offen sc1")
        a(f"s_sub_u32 s{sSPIN}, s{sSPIN}, 1")
        a(f"s_cbranch_scc1 {ld}")
        a(f"v_max_u32 v39, v85, v87")
        a(f"v_cmp_eq_u32 vcc, -1, v39")
        a(f"s_cbranch_vccnz {lp}")
        a(f"{ld}:")
        a(f"s_max_i32 s{sSPIN}, s{sSPIN}, 0")
        a("s_waitcnt vmcnt(0)")
        a(f"v_pk_add_f32 {V(80,2)}, {V(84,2)}, {V(86,2)}")
        self.allred2(80, 81, 82)
        self.meanrstd(80, 81, 512)
        for k in range(8):
            a(f"v_pk_fma_f32 {V(acc+2*k,2)}, {V(acc+2*k,2)}, {V(80,2)}, {V(80,2)} op_sel:[0,1,0] op_sel_hi:[1,1,0]")
        for k in range(8):
            a(f"v_cvt_pk_bf16_f32 v{84+k}, v{acc+2*k}, v{acc+2*k+1}")
        a(f"s_lshl_b32 s{sT0}, s{sMT}, 14")
        a(f"s_lshl_b32 s{sT1}, s{sC}, 11")
        a(f"s_add_u32 s{sT0}, s{sT0}, s{sT1}")
        a(f"s_add_u32 s{sT0}, s{sT0}, {HN_OFF}")
        self.lst(f"buffer_store_dwordx4 {V(84,4)}, v{vL16}, {srd(sWS)}, s{sT0} offen\n"
                 f"buffer_store_dwordx4 {V(88,4)}, v{vL16}, {srd(sWS)}, s{sT0} offen offset:1024")
        a(f"s_lshr_b32 s{sT0}, s{sMT}, 1")
        a(f"s_lshl_b32 s{sT0}, s{sT0}, 7")
        a(f"s_and_b32 s{sT1}, s{sMT}, 1")
        a(f"s_lshl_b32 s{sT1}, s{sT1}, 3")
        a(f"s_add_u32 s{sT1}, s{sT1}, s{sC}")
        a(f"s_lshl_b32 s{sT1}, s{sT1}, 2")
        a(f"s_add_u32 s{sT0}, s{sT0}, s{sT1}")
        a(f"s_add_u32 s{sT0}, s{sT0}, {F3_OFF}")
        self.flag(sT0)
        self.ts("hn_pub")

    def allred2(self, x, y, t):
        a = self.a
        a(f"v_permlane32_swap_b32 v{x}, v{y}")
        a(f"v_add_f32 v{x}, v{x}, v{y}")
        a(f"v_mov_b32 v{t}, v{x}")
        a(f"v_permlane16_swap_b32 v{x}, v{t}")
        a(f"v_add_f32 v{x}, v{x}, v{t}")
        a(f"v_mov_b32 v{y}, v{x}")
        a(f"v_permlane32_swap_b32 v{x}, v{y}")

    def meanrstd(self, s, q, n):
        a = self.a
        a(f"v_mul_f32 v{s}, {FH(-1.0/n)}, v{s}")
        a(f"v_mul_f32 v{q}, {FH(1.0/n)}, v{q}")
        a(f"v_fma_f32 v{q}, -v{s}, v{s}, v{q}")
        a(f"v_max_f32 v{q}, 0, v{q}")
        a(f"v_add_f32 v{q}, {FH(1e-5)}, v{q}")
        a(f"v_rsq_f32 v{q}, v{q}")
        a(f"v_mul_f32 v{s}, v{s}, v{q}")

    def gelu(self, r, n, tmp, vC1):
        a = self.a
        for c0 in range(0, n, 16):
            m = min(16, n - c0)
            for k in range(0, m, 2):
                a(f"v_pk_mul_f32 {V(tmp+k,2)}, {V(r+c0+k,2)}, {V(r+c0+k,2)}")
            for k in range(0, m, 2):
                a(f"v_pk_fma_f32 {V(tmp+k,2)}, {V(tmp+k,2)}, {S(sC2,2)}, {V(vC1,2)}")
            for k in range(0, m, 2):
                a(f"v_pk_mul_f32 {V(tmp+k,2)}, {V(tmp+k,2)}, {V(r+c0+k,2)}")
            for k in range(m):
                a(f"v_exp_f32 v{tmp+k}, v{tmp+k}")
            for k in range(0, m, 2):
                a(f"v_pk_add_f32 {V(tmp+k,2)}, {V(tmp+k,2)}, {S(sONE,2)}")
            for k in range(m):
                a(f"v_rcp_f32 v{tmp+k}, v{tmp+k}")
            for k in range(0, m, 2):
                a(f"v_pk_mul_f32 {V(r+c0+k,2)}, {V(r+c0+k,2)}, {V(tmp+k,2)}")

    def p2b(self):
        a = self.a
        vA = 128
        self.barrier()
        self.twin2 = self.win_part(False)
        a(f"v_mov_b32 v32, {FH(self.c1)}")
        a(f"v_mov_b32 v33, {FH(self.c1)}")
        a(f"s_lshl_b32 s{sT0}, s{sKB}, 7")
        a(f"s_add_u32 s{sT0}, s{sT0}, {F3_OFF}")
        a(f"v_lshl_add_u32 v38, v{vI}, 2, s{sT0}")
        self.poll(38, 39, 1)
        self.ts("hn_rdy")
        a(f"s_lshl_b32 s{sT0}, s{sKB}, 15")
        a(f"s_add_u32 s{sT0}, s{sT0}, {HN_OFF}")
        a(f"s_add_u32 s{sT1}, s{sT0}, 16384")
        for ks in range(16):
            if ks and ks % 4 == 0:
                a(f"s_add_u32 s{sT0}, s{sT0}, 4096")
                a(f"s_add_u32 s{sT1}, s{sT1}, 4096")
            for m in range(2):
                a(f"buffer_load_dwordx4 {V(vA+8*ks+4*m,4)}, v{vL16}, {srd(sWS)}, s{sT0+m} offen offset:{(ks%4)*1024} sc1")
        a.ifelse(f"s_bitcmp1_b32 s{sP}, 0", lambda: self.p2b_body(True), lambda: self.p2b_body(False))

    def tileset(self, quad, base):
        if quad:
            d2, kst = self.tr_addrs('quad', vTR, base, 19, 38)
            return [(vTR+t, d2, kst, 3+t) for t in range(4)]
        d2, kst = self.tr_addrs('pairP', vTR, base, 19, 38)
        e2, est = self.tr_addrs('single', vTR+2, base + 32768, 19, 38)
        return [(vTR, d2, kst, 1), (vTR+1, d2, kst, 2), (vTR+2, e2, est, 0)]

    def p2b_body(self, kindA):
        a = self.a
        vA = 128; z2 = 40; ring = 96
        n2 = 4 if kindA else 3
        n1 = 7 - n2
        z1 = z2 + 8*n2
        tiles2 = self.tileset(kindA, R1F)
        items = []
        for ks in range(16):
            for u, (ad, d2, kst, _) in enumerate(tiles2):
                ms = []
                for m in range(2):
                    d = V(z2+8*u+4*m, 4)
                    ms.append(f"v_mfma_f32_16x16x32_bf16 {d}, {V(vA+8*ks+4*m,4)}, {{b}}, {d if ks else 0}")
                items.append((ad, ks*kst, d2, ms))
        self.gemm(items, ring, 8, 5, 2)
        self.ts("z2_gemm")
        self.gelu(z2, 8*n2, ring, 32)
        for k in range(0, 8, 2):
            a(f"v_pk_add_f32 {V(96+k,2)}, {V(z2+k,2)}, {V(z2+8+k,2)}")
            a(f"v_pk_mul_f32 {V(104+k,2)}, {V(z2+k,2)}, {V(z2+k,2)}")
        for u in range(1, n2):
            for k in range(0, 8, 2):
                if u > 1:
                    a(f"v_pk_add_f32 {V(96+k,2)}, {V(96+k,2)}, {V(z2+8*u+k,2)}")
                a(f"v_pk_fma_f32 {V(104+k,2)}, {V(z2+8*u+k,2)}, {V(z2+8*u+k,2)}, {V(104+k,2)}")
        for base in (96, 104):
            for k in range(4):
                a(f"v_add_f32_dpp v{base+k}, v{base+k}, v{base+k} row_ror:8 row_mask:0xf bank_mask:0x3")
            for k in range(4):
                a(f"v_add_f32_dpp v{base+k}, v{base+4+k}, v{base+4+k} row_ror:8 row_mask:0xf bank_mask:0xc")
        for base in (96, 104):
            for k in range(2):
                a(f"v_add_f32_dpp v{base+k}, v{base+k}, v{base+k} row_half_mirror row_mask:0xf bank_mask:0x5")
            for k in range(2):
                a(f"v_add_f32_dpp v{base+k}, v{base+2+k}, v{base+2+k} row_half_mirror row_mask:0xf bank_mask:0xa")
        for qp in ("[1,0,3,2]", "[2,3,0,1]"):
            for r in (96, 97, 104, 105):
                a(f"v_add_f32_dpp v{r}, v{r}, v{r} quad_perm:{qp} row_mask:0xf bank_mask:0xf")
        a(f"v_and_b32 v19, 1, v{vLANE}")
        a(f"v_cmp_eq_u32 vcc, 1, v19")
        a(f"v_cndmask_b32 v96, v96, v97, vcc")
        a(f"v_cndmask_b32 v97, v104, v105, vcc")
        a(f"v_max_f32 v97, 0, v97")
        a(f"v_lshrrev_b32 v38, 2, v{vLANE}")
        a(f"v_lshl_or_b32 v38, v38, 1, v19")
        a(f"v_lshlrev_b32 v38, 7, v38")
        a(f"s_lshl_b32 s{sT0}, s{sKB}, 12")
        a(f"s_lshl_b32 s{sT1}, s{sP}, 3")
        a(f"s_add_u32 s{sT0}, s{sT0}, s{sT1}")
        a(f"s_add_u32 s{sT0}, s{sT0}, {ST2_OFF}")
        a(f"s_mov_b32 exec_lo, 0x33333333")
        a(f"s_mov_b32 exec_hi, 0x33333333")
        self.lst(f"buffer_store_dwordx2 {V(96,2)}, v38, {srd(sWS)}, s{sT0} offen")
        a(f"s_mov_b64 exec, -1")
        self.ts("st2_pub")
        a.wait(*self.twin2)
        self.barrier()
        tiles1 = self.tileset(not kindA, R0)
        items = []
        for ks in range(16):
            for u, (ad, d2, kst, _) in enumerate(tiles1):
                ms = []
                for m in range(2):
                    d = V(z1+8*u+4*m, 4)
                    ms.append(f"v_mfma_f32_16x16x32_bf16 {d}, {{b}}, {V(vA+8*ks+4*m,4)}, {d if ks else 0}")
                items.append((ad, ks*kst, d2, ms))
        self.gemm(items, ring, 8, 5, 2)
        self.ts("z1_gemm")
        a(f"v_lshlrev_b32 v38, 6, v{vLANE}")
        a(f"s_lshl_b32 s{sT0}, s{sKB}, 12")
        a(f"s_add_u32 s{sT0}, s{sT0}, {ST2_OFF}")
        lp = a.label('Lst2'); ld = a.label('Lst2d')
        a(f"{lp}:")
        for k in range(4):
            a(f"buffer_load_dwordx4 {V(128+4*k,4)}, v38, {srd(sWS)}, s{sT0} offen offset:{16*k} sc1")
        a(f"s_sub_u32 s{sSPIN}, s{sSPIN}, 1")
        a(f"s_cbranch_scc1 {ld}")
        a(f"v_max_u32 v39, v129, v131")
        for k in range(1, 4):
            a(f"v_max3_u32 v39, v39, v{129+4*k}, v{131+4*k}")
        a(f"v_cmp_eq_u32 vcc, -1, v39")
        a(f"s_cbranch_vccnz {lp}")
        a(f"{ld}:")
        a(f"s_max_i32 s{sSPIN}, s{sSPIN}, 0")
        a("s_waitcnt vmcnt(0)")
        for k in range(4):
            a(f"v_pk_add_f32 {V(128+2*k,2)}, {V(128+2*k,2)}, {V(136+2*k,2)}")
        for k in range(2):
            a(f"v_pk_add_f32 {V(128+2*k,2)}, {V(128+2*k,2)}, {V(132+2*k,2)}")
        a(f"v_pk_add_f32 {V(128,2)}, {V(128,2)}, {V(130,2)}")
        for r in (128, 129):
            a(f"v_add_f32_dpp v{r}, v{r}, v{r} quad_perm:[1,0,3,2] row_mask:0xf bank_mask:0xf")
        self.meanrstd(128, 129, 896)
        a(f"v_and_b32 v19, 1, v{vLANE}")
        a(f"v_cmp_eq_u32 vcc, 1, v19")
        a(f"v_cndmask_b32 v128, v128, v129, vcc")
        a(f"v_lshlrev_b32 v19, 7, v19")
        a(f"v_lshrrev_b32 v38, 1, v{vLANE}")
        a(f"v_lshl_add_u32 v19, v38, 2, v19")
        a(f"s_lshl_b32 s{sT0}, s{sWV}, 8")
        a(f"s_add_u32 s{sT0}, s{sT0}, {SCR2}")
        a(f"v_add_u32 v19, s{sT0}, v19")
        t = a(f"ds_write_b32 v19, v128")
        a(f"v_lshl_add_u32 v38, v{vG}, 5, s{sT0}")
        a.wait(t)
        for k in range(2):
            a(f"ds_read_b128 {V(132+4*k,4)}, v38 offset:{16*k}")
            a(f"ds_read_b128 {V(140+4*k,4)}, v38 offset:{128+16*k}")
        for u in range(n2):
            for k in range(0, 8, 2):
                a(f"v_pk_fma_f32 {V(z2+8*u+k,2)}, {V(z2+8*u+k,2)}, {V(140+k,2)}, {V(132+k,2)}")
        for u, (_, _, _, ni) in enumerate(tiles2):
            for k in range(4):
                a(f"v_cvt_pk_bf16_f32 v{148+4*u+k}, v{z2+8*u+2*k}, v{z2+8*u+2*k+1}")
            a(f"s_lshl_b32 s{sT0}, s{sN+ni}, 6")
            a(f"s_add_u32 s{sT0}, s{sT0}, s{sKB}")
            a(f"s_lshl_b32 s{sT0}, s{sT0}, 10")
            a(f"s_add_u32 s{sT0}, s{sT0}, {Z2_OFF}")
            a(f"buffer_store_dwordx4 {V(148+4*u,4)}, v{vL16}, {srd(sWS)}, s{sT0} offen sc1")
        a("s_waitcnt vmcnt(0)")
        a("s_barrier")
        def arrive():
            a(f"s_lshl_b32 s{sT0}, s{sC}, 7")
            a(f"s_add_u32 s{sT0}, s{sT0}, {F4_OFF}")
            a(f"v_mov_b32 v19, 1")
            a("s_mov_b64 exec, 1")
            a(f"buffer_atomic_add v19, off, {srd(sWS)}, s{sT0}")
            a("s_mov_b64 exec, -1")
        a.ifonly(f"s_cmp_lg_u32 s{sWV}, 0", arrive)
        self.ts("z2_pub")
        self.gelu(z1, 8*n1, ring, 32)
        a(f"v_lshlrev_b32 v38, 3, v{vLANE}")
        a(f"s_mul_i32 s{sT1}, s{sKB}, {2*56*512}")
        a(f"s_add_u32 s{sT1}, s{sT1}, {Z1_OFF}")
        for u, (_, _, _, ni) in enumerate(tiles1):
            for k in range(4):
                a(f"v_cvt_pk_bf16_f32 v{128+4*u+k}, v{z1+8*u+2*k}, v{z1+8*u+2*k+1}")
            a(f"s_lshl_b32 s{sT0}, s{sN+ni}, 9")
            a(f"s_add_u32 s{sT0}, s{sT0}, s{sT1}")
            a(f"s_add_u32 s{sT2}, s{sT0}, {56*512}")
            self.lst(f"buffer_store_dwordx2 {V(128+4*u,2)}, v38, {srd(sWS)}, s{sT0} offen\n"
                     f"buffer_store_dwordx2 {V(130+4*u,2)}, v38, {srd(sWS)}, s{sT2} offen")
        a(f"s_lshl_b32 s{sT0}, s{sKB}, 7")
        a(f"s_lshl_b32 s{sT1}, s{sP}, 2")
        a(f"s_add_u32 s{sT0}, s{sT0}, s{sT1}")
        a(f"s_add_u32 s{sT0}, s{sT0}, {F4B_OFF}")
        self.flag(sT0)
        self.ts("z1_pub")

    def p3(self):
        a = self.a
        rpg = self.dma_voffs('quad', 1024, 19, 38)
        a(f"s_lshl_b32 s{sT0}, s{sC}, 7")
        self.dma_image(sWOUT, 1024, rpg, sT0, R1F, 0, 12)
        self.twout = self.dma_image(sWOUT, 1024, rpg, sT0, R0, 0, 16, krow0=12*32)
        for r in range(8):
            tok = self.wsp_issue(r)
            t = self.wsp_read(r, tok)
            a.wait(t)
        self.ts("wsp_rdy")
        a(f"s_lshr_b32 s{sT0}, s{sMT}, 1")
        a(f"s_lshl_b32 s{sT0}, s{sT0}, 7")
        a(f"s_lshl_b32 s{sT1}, s{sC}, 3")
        a(f"s_add_u32 s{sT0}, s{sT0}, s{sT1}")
        a(f"s_add_u32 s{sT0}, s{sT0}, {F4B_OFF}")
        a(f"v_and_b32 v38, 1, v{vLANE}")
        a(f"v_lshl_add_u32 v38, v38, 2, s{sT0}")
        self.poll(38, 39, 1)
        vZ1 = 40; vB = 34
        a(f"v_lshlrev_b32 v38, 3, v{vLANE}")
        a(f"s_mul_i32 s{sT1}, s{sMT}, {56*512}")
        a(f"s_add_u32 s{sT1}, s{sT1}, {Z1_OFF}")
        for n in range(7):
            a(f"s_lshl_b32 s{sT0}, s{sN+n}, 9")
            a(f"s_add_u32 s{sT0}, s{sT0}, s{sT1}")
            a(f"buffer_load_dwordx2 {V(vZ1+2*n,2)}, v38, {srd(sWS)}, s{sT0} offen sc1")
        self.rowoff(38, 19)
        a(f"v_lshlrev_b32 v38, 1, v38")
        a(f"buffer_load_ushort v{vB}, v38, {srd(sBSP)}, 0 offen")
        def waitz2():
            a(f"s_lshl_b32 s{sT0}, s{sC}, 7")
            a(f"s_add_u32 s{sT0}, s{sT0}, {F4_OFF}")
            a(f"v_mov_b32 v38, s{sT0}")
            self.poll(38, 39, 31)
        a.ifonly(f"s_cmp_lg_u32 s{sWV}, 0", waitz2)
        self.barrier()
        self.ts("z2_rdy")
        a(f"v_lshlrev_b32 v{vB}, 16, v{vB}")
        ring = 128; acc = 64; vBA = 36; vW = 35; vR = 37; red = 96; vY = 112
        a(f"s_lshl_b32 s{sT0}, s{sWV}, 12")
        a(f"s_add_u32 s{sT0}, s{sT0}, {STG}")
        a(f"v_add_u32 v{vW}, s{sT0}, v{vL16}")
        a(f"s_lshl_b32 s{sT0}, s{sWV}, 10")
        a(f"s_add_u32 s{sT0}, s{sT0}, {STG}")
        a(f"v_add_u32 v{vR}, s{sT0}, v{vL16}")
        a(f"s_lshl_b32 s{sT3}, s{sWV}, 14")
        a(f"s_add_u32 s{sT3}, s{sT3}, {Z2_OFF}")
        a(f"s_mul_i32 s{sT2}, s{sMT}, {28*1024}")
        a(f"s_add_u32 s{sT2}, s{sT2}, {Y_OFF}")
        def setb(n):
            a(f"s_lshl_b32 s{sT0}, s{sN+n}, 16")
            a(f"s_add_u32 s{sT0}, s{sT0}, s{sT3}")
            a(f"v_add_u32 v{vBA}, s{sT0}, v{vL16}")
        def loadb(s):
            a(f"buffer_load_dwordx4 {V(ring+4*s,4)}, v{vBA}, {srd(sWS)}, s{sROT+(s>>1)} offen offset:{(s&1)*1024} sc1")
        def wr(n):
            for mt in range(4):
                a(f"ds_write_b128 v{vW}, {V(acc+16*(n&1)+4*mt,4)} offset:{(n&1)*16384+mt*1024}")
        def rd(n):
            for w in range(4):
                a(f"ds_read_b128 {V(red+4*w,4)}, v{vR} offset:{(n&1)*16384+w*4096}")
        def fin(n):
            for k in range(4):
                a(f"v_add_f32 v{red+k}, v{red+k}, v{red+4+k}")
                a(f"v_add_f32 v{red+8+k}, v{red+8+k}, v{red+12+k}")
            for k in range(4):
                a(f"v_add_f32 v{red+k}, v{red+k}, v{vB}")
            for h in range(2):
                a(f"v_lshlrev_b32 v{red+4+2*h}, 16, v{vZ1+2*n+h}")
                a(f"v_and_b32 v{red+5+2*h}, 0xffff0000, v{vZ1+2*n+h}")
            for k in range(4):
                a(f"v_add_f32 v{red+k}, v{red+k}, v{red+8+k}")
            for k in range(4):
                a(f"v_mul_f32 v{red+k}, v{red+k}, v{red+4+k}")
            half = 0 if n == 0 else (n - 1) & 1
            for h in range(2):
                a(f"v_cvt_pk_bf16_f32 v{vY+2*half+h}, v{red+2*h}, v{red+2*h+1}")
            if n == 0:
                a(f"s_lshr_b32 s{sT0}, s{sN}, 1")
                a(f"s_lshl_b32 s{sT0}, s{sT0}, 10")
                a(f"s_and_b32 s{sT1}, s{sN}, 1")
                a(f"s_lshl_b32 s{sT1}, s{sT1}, 3")
                a(f"s_add_u32 s{sT0}, s{sT0}, s{sT1}")
                a(f"s_add_u32 s{sT0}, s{sT0}, s{sT2}")
                self.lst(f"buffer_store_dwordx2 {V(vY,2)}, v{vL16}, {srd(sWS)}, s{sT0} offen")
            elif half:
                a(f"s_lshr_b32 s{sT0}, s{sN+n}, 1")
                a(f"s_lshl_b32 s{sT0}, s{sT0}, 10")
                a(f"s_add_u32 s{sT0}, s{sT0}, s{sT2}")
                self.lst(f"buffer_store_dwordx4 {V(vY,4)}, v{vL16}, {srd(sWS)}, s{sT0} offen")
        setb(0)
        for s in range(16):
            loadb(s)
        for n in range(7):
            if n < 6:
                setb(n + 1)
            for s in range(16):
                for mt in range(4):
                    d = V(acc+16*(n&1)+4*mt, 4)
                    a(f"v_mfma_f32_16x16x32_bf16 {d}, {V(ring+4*s,4)}, {A(16*s+4*mt,4)}, {d if s else 0}")
                if n < 6:
                    loadb(s)
                if n > 0:
                    if s == 1:
                        wr(n - 1)
                    if s == 5:
                        self.barrier()
                        rd(n - 1)
                    if s == 8:
                        fin(n - 1)
        wr(6)
        self.barrier()
        rd(6)
        fin(6)
        a(f"s_lshl_b32 s{sT0}, s{sMT}, 7")
        a(f"s_lshl_b32 s{sT1}, s{sC}, 2")
        a(f"s_add_u32 s{sT0}, s{sT0}, s{sT1}")
        a(f"s_add_u32 s{sT0}, s{sT0}, {F5_OFF}")
        self.flag(sT0)
        self.ts("y_pub")

    def p4(self):
        a = self.a
        vA = 128; acc = 64
        d2, kst = self.tr_addrs('quad', vTR, R0, 19, 38)
        for t in range(4):
            a(f"v_add_u32 v{40+t}, {R1F}, v{vTR+t}")
        a(f"s_lshl_b32 s{sT0}, s{sMT}, 7")
        a(f"s_add_u32 s{sT0}, s{sT0}, {F5_OFF}")
        a(f"v_and_b32 v38, 7, v{vLANE}")
        a(f"v_lshl_add_u32 v38, v38, 2, s{sT0}")
        self.poll(38, 39, 1)
        self.ts("y_rdy")
        a(f"s_mul_i32 s{sT0}, s{sMT}, {28*1024}")
        a(f"s_add_u32 s{sT0}, s{sT0}, {Y_OFF}")
        for ks in range(28):
            if ks and ks % 4 == 0:
                a(f"s_add_u32 s{sT0}, s{sT0}, 4096")
            a(f"buffer_load_dwordx4 {V(vA+4*ks,4)}, v{vL16}, {srd(sWS)}, s{sT0} offen offset:{(ks%4)*1024} sc1")
        for t in range(4):
            for h in range(2):
                a(f"v_lshlrev_b32 v{acc+4*t+2*h}, 16, v{vH+2*t+h}")
                a(f"v_and_b32 v{acc+4*t+2*h+1}, 0xffff0000, v{vH+2*t+h}")
        items = []
        for ks in range(28):
            for t in range(4):
                d = V(acc+4*t, 4)
                ad, off = (40 + t, ks*kst) if ks < 12 else (vTR + t, (ks-12)*kst)
                items.append((ad, off, d2, [f"v_mfma_f32_16x16x32_bf16 {d}, {{b}}, {V(vA+4*ks,4)}, {d}"]))
        self.gemm(items, 80, 12, 7, 4)
        self.rowoff(38, 19)
        a(f"v_lshlrev_b32 v38, 10, v38")
        a(f"v_lshl_add_u32 v38, v{vG}, 3, v38")
        a(f"s_lshl_b32 s{sT0}, s{sC}, 7")
        for t in range(4):
            for h in range(2):
                a(f"v_cvt_pk_bf16_f32 v{80+2*t+h}, v{acc+4*t+2*h}, v{acc+4*t+2*h+1}")
            a(f"buffer_store_dwordx2 {V(80+2*t,2)}, v38, {srd(sOUT)}, s{sT0} offen offset:{32*t}")
        self.ts("end")

    def build(self):
        a = self.a
        self.setup()
        for name, fn in (('p1', self.p1), ('p2a', self.p2a), ('p2b', self.p2b), ('p3', self.p3), ('p4', self.p4)):
            fn()
            if self.stop == name:
                break
        if self.prof:
            a(f"s_lshl_b32 s{sT0}, s2, 10")
            a(f"s_lshl_b32 s{sT1}, s{sWV}, 8")
            a(f"s_add_u32 s{sT0}, s{sT0}, s{sT1}")
            a(f"s_add_u32 s{sT0}, s{sT0}, {TS_OFF}")
            a(f"v_writelane_b32 v{vTS}, s{sSPIN}, 62")
            a(f"v_writelane_b32 v{vTS}, s{sMODE}, 63")
            a(f"v_lshlrev_b32 v19, 2, v{vLANE}")
            a(f"buffer_store_dword v{vTS}, v19, {srd(sWS)}, s{sT0} offen")
        a("L_end:")
        a("s_endpgm")
        body = a.finish()
        ref = open('cdna_kernels/' + NAME + '.s.ref').read().split('\n')
        hdr = [l for l in ref if l.startswith(';') and '@launch' not in l]
        k = NAME + "_kernel"
        txt = "\n".join(hdr) + f"\n; @launch grid=(256,1,1) block=(256,1,1) lds={LDS_SIZE}\n"
        txt += '.amdgcn_target "amdgcn-amd-amdhsa--gfx950"\n.text\n'
        txt += f".globl {k}\n.p2align 8\n.type {k},@function\n{k}:\n" + body
        txt += f""".section .rodata,"a"
.p2align 6
.amdhsa_kernel {k}
  .amdhsa_next_free_vgpr 512
  .amdhsa_next_free_sgpr 102
  .amdhsa_accum_offset 256
  .amdhsa_group_segment_fixed_size 0
  .amdhsa_kernarg_size 96
  .amdhsa_user_sgpr_count 2
  .amdhsa_user_sgpr_kernarg_segment_ptr 1
  .amdhsa_system_sgpr_workgroup_id_x 1
.end_amdhsa_kernel
"""
        return txt


if __name__ == "__main__":
    import argparse, json
    ap = argparse.ArgumentParser()
    ap.add_argument('-o', default='cdna_kernels/' + NAME + '.s')
    ap.add_argument('--prof', action='store_true')
    ap.add_argument('--slow', action='store_true')
    ap.add_argument('--stop')
    args = ap.parse_args()
    g = Gen(prof=args.prof, stop=args.stop, force_slow=args.slow)
    txt = g.build()
    if args.prof:
        txt = txt.replace("; @launch", "; tsnames " + ",".join(g.tsnames) + "\n; @launch", 1)
    open(args.o, 'w').write(txt)
    print("wrote", args.o, len(txt), "bytes,", txt.count("\n"), "lines")
```

```python
import sys, struct, math
sys.path.insert(0, 'work')
from asmlib import *

NAME = "sequential_preLN__linear_kernel_hedgehog__mixer_gmlp__prompt"

def f2u(x):
    return struct.unpack('<I', struct.pack('<f', x))[0]
def FH(x):
    return "0x%08x" % f2u(x)

MB = 1 << 20
O_OFF = 0
HN_OFF = 2 * MB
Z2_OFF = 4 * MB
Z1_OFF = 8 * MB
Y_OFF = 12 * MB
CLR_OFF = 16 * MB
KV_OFF = CLR_OFF
KVZ_OFF = CLR_OFF + MB
ST1_OFF = KVZ_OFF + 0x10000
ST2_OFF = ST1_OFF + 0x20000
F2_OFF = ST2_OFF + 0x40000
F3_OFF = F2_OFF + 0x2000
F4B_OFF = F3_OFF + 0x2000
F5_OFF = F4B_OFF + 0x2000
F4_OFF = F5_OFF + 0x4000
TS_OFF = 18 * MB
WS_SIZE = 19 * MB

R0 = 0
RK = 65536
RV = 98304
RQ = 131072
R1F = 65536
STG = 131072
SCR = 131072 - 20480
SCR2 = 131072 - 16384
LDS_SIZE = 163840

sX_, sWQKV, sWO, sWIN, sWSP, sWOUT, sOUT, sWS, sWPHI, sBSP, sDBG = 4, 8, 12, 16, 20, 24, 28, 32, 36, 40, 44
sXC, sJ, sRB, sP, sRB64, sC, sWV, sMODE, sSPIN, sKB, sMT = range(48, 59)
sT0, sT1, sT2, sT3, sT4 = range(59, 64)
sN = 64
sROT = 72
sL = 80
sC2 = 82
sONE = 84
sSO = 86
sSP = 87
sTS = 98

def srd(b): return S(b, 4)

vLANE, vL16, vTS, vI, vG = 0, 1, 2, 3, 4
vSTG = 5
vRDA = 9
vDMA = 11
vTR = 15
vT = 19
vST = 20
vH = 24


class Gen:
    def __init__(self, prof=False, stop=None, force_slow=False, dbgts=None, opt=()):
        self.dbgts = dbgts
        self.opt = set(opt)
        self.a = Asm()
        self.prof = prof
        self.stop = stop
        self.force_slow = force_slow
        self.nts = 0
        self.tsnames = []

    def ts(self, name):
        if not self.prof:
            return
        if self.dbgts and name not in self.dbgts:
            return
        a = self.a
        if name in self.tsnames:
            idx = self.tsnames.index(name)
        else:
            idx = len(self.tsnames); self.tsnames.append(name)
        a(f"s_memrealtime {S(sTS,2)}")
        a("s_waitcnt lgkmcnt(0)")
        a(f"v_writelane_b32 v{vTS}, s{sTS}, {idx}")

    def barrier(self):
        self.a("s_waitcnt lgkmcnt(0)")
        self.a("s_barrier")

    def lst(self, text):
        slow = "\n".join(l + " sc1" if l.strip().startswith(('buffer_store', 'global_store')) else l for l in text.strip().split('\n'))
        return self.a.both(f"s_cmp_lg_u32 s{sMODE}, 0", text, slow)

    def poll(self, vaddr, vtmp, expect):
        a = self.a
        lp = a.label('Lpoll'); ld = a.label('Lpd')
        a(f"{lp}:")
        a(f"buffer_load_dword v{vtmp}, v{vaddr}, {srd(sWS)}, 0 offen sc1")
        a(f"s_sub_u32 s{sSPIN}, s{sSPIN}, 1")
        a(f"s_cbranch_scc1 {ld}")
        a(f"v_cmp_ne_u32 vcc, {expect}, v{vtmp}")
        a(f"s_cbranch_vccnz {lp}")
        a(f"{ld}:")
        a(f"s_max_i32 s{sSPIN}, s{sSPIN}, 0")
        a("s_waitcnt vmcnt(0)")

    def flag(self, soff_expr_reg):
        a = self.a
        a("s_waitcnt vmcnt(0)")
        a(f"v_mov_b32 v{vT}, 1")
        a("s_mov_b64 exec, 1")
        self.lst(f"buffer_store_dword v{vT}, off, {srd(sWS)}, s{soff_expr_reg}")
        a("s_mov_b64 exec, -1")

    def dma_voffs(self, kind, rs, t0, t1):
        a = self.a
        if kind in ('pairN', 'pairP'):
            rows = 16
            a(f"v_lshrrev_b32 v{t0}, 2, v{vLANE}")
            if kind == 'pairN':
                a(f"v_lshrrev_b32 v{t1}, 5, v{vLANE}")
            else:
                a(f"v_and_b32 v{t1}, 1, v{vG}")
            a(f"v_lshlrev_b32 v{t1}, 1, v{t1}")
            a(f"v_xor_b32 v{t1}, v{t1}, v{vLANE}")
            a(f"v_and_b32 v{t1}, 3, v{t1}")
        elif kind == 'quad':
            rows = 8
            a(f"v_lshrrev_b32 v{t0}, 3, v{vLANE}")
            a(f"v_lshlrev_b32 v{t1}, 1, v{vG}")
            a(f"v_xor_b32 v{t1}, v{t1}, v{vLANE}")
            a(f"v_and_b32 v{t1}, 7, v{t1}")
        else:
            rows = 32
            a(f"v_lshrrev_b32 v{t0}, 1, v{vLANE}")
            a(f"v_and_b32 v{t1}, 1, v{vLANE}")
        a(f"v_mul_u32_u24 v{t0}, {rs}, v{t0}")
        a(f"v_lshl_add_u32 v{vDMA}, v{t1}, 4, v{t0}")
        for u in range(1, 4):
            a(f"v_add_u32 v{vDMA+u}, {u*(rows*rs-1024)}, v{vDMA}")
        return rows * 4

    def dma_group(self, vbase, srdb, flags=""):
        tok = None
        for u in range(4):
            off = f" offset:{u*1024}" if u else ""
            tok = self.a(f"buffer_load_dwordx4 v{vbase+u}, {srd(srdb)}, s{sSO} offen{off} {flags} lds")
        return tok

    def dma_image(self, srdb, rs, rows_per_group, col_sreg, ldsbase, g0, ngroups_total, krow0=0):
        a = self.a
        per = ngroups_total // 4
        a(f"s_mul_i32 s{sSO}, s{sWV}, {per*rows_per_group*rs}")
        a(f"s_add_u32 s{sSO}, s{sSO}, s{col_sreg}")
        if krow0:
            a(f"s_add_u32 s{sSO}, s{sSO}, {krow0*rs}")
        a(f"s_mul_i32 s{sT4}, s{sWV}, {per*4096}")
        a(f"s_add_u32 m0, s{sT4}, {ldsbase}")
        tok = None
        for g in range(per):
            if g:
                a(f"s_add_u32 s{sSO}, s{sSO}, {rows_per_group*rs}")
                a(f"s_add_u32 m0, m0, 4096")
            tok = self.dma_group(vDMA, srdb)
        return tok

    def tr_addrs(self, kind, dst, ldsbase, t0, t1):
        a = self.a
        a(f"v_bfe_u32 v{t0}, v{vLANE}, 2, 2")
        a(f"v_lshl_add_u32 v{t0}, v{vG}, {3 if kind == 'pairN' else 2}, v{t0}")
        a(f"v_and_b32 v{t1}, 3, v{vLANE}")
        a(f"v_lshlrev_b32 v{t1}, 3, v{t1}")
        if kind in ('pairN', 'pairP'):
            a(f"v_lshl_add_u32 v{t1}, v{t0}, 6, v{t1}")
            a(f"v_and_b32 v{t0}, 1, v{vG}")
            a(f"v_lshl_add_u32 v{t1}, v{t0}, 5, v{t1}")
            a(f"v_add_u32 v{dst}, {ldsbase}, v{t1}")
            a(f"v_xor_b32 v{dst+1}, 32, v{dst}")
            return (256 if kind == 'pairN' else 1024), 2048
        if kind == 'quad':
            a(f"v_lshl_add_u32 v{t1}, v{t0}, 7, v{t1}")
            a(f"v_bfe_u32 v{t0}, v{t0}, 1, 2")
            a(f"v_lshl_add_u32 v{t1}, v{t0}, 5, v{t1}")
            a(f"v_add_u32 v{dst}, {ldsbase}, v{t1}")
            for t in range(1, 4):
                a(f"v_xor_b32 v{dst+t}, {32*t}, v{dst}")
            return 2048, 4096
        a(f"v_lshl_add_u32 v{t1}, v{t0}, 5, v{t1}")
        a(f"v_add_u32 v{dst}, {ldsbase}, v{t1}")
        return 512, 1024

    def stg_voffs(self, rs, t0, t1):
        a = self.a
        a(f"v_lshrrev_b32 v{t0}, 5, v{vLANE}")
        a(f"v_bfe_u32 v{t1}, v{vLANE}, 3, 2")
        a(f"v_lshl_add_u32 v{t0}, v{t0}, 3, v{t1}")
        a(f"v_mul_u32_u24 v{t0}, {rs}, v{t0}")
        a(f"v_xor_b32 v{t1}, v{vG}, v{vLANE}")
        a(f"v_and_b32 v{t1}, 7, v{t1}")
        a(f"v_lshl_add_u32 v{vSTG}, v{t1}, 4, v{t0}")
        a(f"v_xor_b32 v{t1}, 64, v{vSTG}")
        a(f"v_add_u32 v{vSTG+1}, {16*rs-1024}, v{t1}")
        a(f"v_add_u32 v{vSTG+2}, {4*rs-2048}, v{vSTG}")
        a(f"v_add_u32 v{vSTG+3}, {20*rs-3072}, v{t1}")

    def stg_rdaddr(self, base, wavestride, t0):
        a = self.a
        a(f"v_lshrrev_b32 v{t0}, 1, v{vI}")
        a(f"v_xor_b32 v{t0}, v{t0}, v{vG}")
        a(f"v_lshlrev_b32 v{t0}, 4, v{t0}")
        a(f"v_lshl_add_u32 v{t0}, v{vI}, 7, v{t0}")
        a(f"s_mul_i32 s{sT4}, s{sWV}, {wavestride}")
        a(f"s_add_u32 s{sT4}, s{sT4}, {base}")
        a(f"v_add_u32 v{vRDA}, s{sT4}, v{t0}")
        a(f"v_xor_b32 v{vRDA+1}, 64, v{vRDA}")

    def gemm(self, items, ring, nring, la, group):
        a = self.a
        assert la + group <= nring + 0 or la < nring
        toks = {}
        def rd(idx, half):
            addr, off, d2, _ = items[idx]
            r = ring + 4 * (idx % nring) + 2 * half
            toks[idx] = a(f"ds_read_b64_tr_b16 {V(r,2)}, v{addr} offset:{off + d2*half}")
        for idx in range(min(la, len(items))):
            rd(idx, 0); rd(idx, 1)
        for idx, it in enumerate(items):
            if idx % group == 0:
                last = min(idx + group, len(items)) - 1
                assert last in toks, "look-ahead smaller than wait group"
                a.wait(toks[last])
            b = V(ring + 4 * (idx % nring), 4)
            pend = [0, 1] if idx + la < len(items) else []
            ms = it[3]
            for k, m in enumerate(ms):
                a(m.format(b=b))
                if pend:
                    rd(idx + la, pend.pop(0))
            while pend:
                rd(idx + la, pend.pop(0))

    def red4(self, op, r, dst):
        a = self.a
        a(f"v_permlane32_swap_b32 v{r[0]}, v{r[1]}")
        a(f"v_permlane32_swap_b32 v{r[2]}, v{r[3]}")
        a(f"{op} v{r[0]}, v{r[0]}, v{r[1]}")
        a(f"{op} v{r[2]}, v{r[2]}, v{r[3]}")
        a(f"v_permlane16_swap_b32 v{r[0]}, v{r[2]}")
        a(f"{op} v{dst}, v{r[0]}, v{r[2]}")

    def bc4(self, r):
        a = self.a
        a(f"v_mov_b32 v{r[2]}, v{r[0]}")
        a(f"v_permlane16_swap_b32 v{r[0]}, v{r[2]}")
        a(f"v_mov_b32 v{r[1]}, v{r[0]}")
        a(f"v_mov_b32 v{r[3]}, v{r[2]}")
        a(f"v_permlane32_swap_b32 v{r[0]}, v{r[1]}")
        a(f"v_permlane32_swap_b32 v{r[2]}, v{r[3]}")

    def setup(self):
        a = self.a
        a(f"s_cmp_ge_u32 s2, 256")
        a(f"s_cbranch_scc1 L_end")
        a(f"s_load_dwordx16 s[64:79], s[0:1], 0")
        a(f"s_load_dwordx8 s[80:87], s[0:1], 64")
        a(f"v_lshrrev_b32 v1, 6, v0")
        a(f"v_and_b32 v{vLANE}, 63, v0")
        a(f"v_readfirstlane_b32 s{sWV}, v1")
        a(f"v_lshlrev_b32 v{vL16}, 4, v{vLANE}")
        a(f"v_and_b32 v{vI}, 15, v{vLANE}")
        a(f"v_lshrrev_b32 v{vG}, 4, v{vLANE}")
        a(f"v_mov_b32 v{vTS}, 0")
        a(f"s_and_b32 s{sXC}, s2, 7")
        a(f"s_lshr_b32 s{sJ}, s2, 3")
        a(f"s_lshr_b32 s{sT0}, s{sJ}, 4")
        a(f"s_lshl_b32 s{sRB}, s{sXC}, 1")
        a(f"s_add_u32 s{sRB}, s{sRB}, s{sT0}")
        a(f"s_and_b32 s{sP}, s{sJ}, 15")
        a(f"s_and_b32 s{sT0}, s{sJ}, 1")
        a(f"s_lshl_b32 s{sRB64}, s{sRB}, 1")
        a(f"s_add_u32 s{sRB64}, s{sRB64}, s{sT0}")
        a(f"s_lshr_b32 s{sC}, s{sP}, 1")
        a(f"s_lshl_b32 s{sKB}, s{sRB}, 2")
        a(f"s_add_u32 s{sKB}, s{sKB}, s{sWV}")
        a(f"s_lshl_b32 s{sMT}, s{sRB64}, 2")
        a(f"s_add_u32 s{sMT}, s{sMT}, s{sWV}")
        a(f"s_mov_b32 s{sSPIN}, 0x80000")
        a(f"s_mov_b32 s{sMODE}, 1")
        a("s_waitcnt lgkmcnt(0)")
        for (b, p, n) in ((sX_, 0, 2048*512*2), (sWQKV, 1, 512*1536*2), (sWPHI, 2, 32*16*16*2), (sWO, 3, 512*512*2),
                          (sWIN, 5, 512*1792*2), (sWSP, 6, 2048*2048*2), (sBSP, 7, 2048*2), (sWOUT, 8, 896*512*2),
                          (sOUT, 9, 2048*512*2), (sDBG, 10, 256), (sWS, 11, WS_SIZE)):
            a(f"s_mov_b32 s{b}, s{64+2*p}")
            a(f"s_and_b32 s{b+1}, s{65+2*p}, 0xffff")
            a(f"s_mov_b32 s{b+2}, {n}")
            a(f"s_mov_b32 s{b+3}, 0x20000")
        self.ts("start")
        L = math.log2(math.e)
        k = math.sqrt(2.0 / math.pi)
        self.c1 = -2.0 * k * L
        self.c2 = self.c1 * 0.044715
        a(f"s_mov_b32 s{sL}, {FH(L)}")
        a(f"s_mov_b32 s{sL+1}, {FH(L)}")
        a(f"s_mov_b32 s{sC2}, {FH(self.c2)}")
        a(f"s_mov_b32 s{sC2+1}, {FH(self.c2)}")
        a(f"s_mov_b32 s{sONE}, 1.0")
        a(f"s_mov_b32 s{sONE+1}, 1.0")
        a(f"s_mul_i32 s{sT0}, s{sC}, 3")
        a(f"s_add_u32 s{sT0}, s{sT0}, 32")
        a(f"s_and_b32 s{sT1}, s{sC}, 1")
        a(f"s_add_u32 s{sN+1}, s{sT0}, s{sT1}")
        a(f"s_add_u32 s{sN+2}, s{sN+1}, 1")
        a(f"s_xor_b32 s{sT1}, s{sT1}, 1")
        a(f"s_lshl_b32 s{sT1}, s{sT1}, 1")
        a(f"s_add_u32 s{sN}, s{sT0}, s{sT1}")
        a(f"s_lshl_b32 s{sN+3}, s{sC}, 2")
        for t in range(1, 4):
            a(f"s_add_u32 s{sN+3+t}, s{sN+3}, {t}")
        for r in range(8):
            a(f"s_add_u32 s{sT0}, s{sC}, {r}")
            a(f"s_and_b32 s{sT0}, s{sT0}, 7")
            a(f"s_lshl_b32 s{sROT+r}, s{sT0}, 11")
        a(f"s_lshl_b32 s{sSP}, s{sRB64}, 18")
        a(f"s_lshl_b32 s{sT0}, s{sWV}, 10")
        a(f"s_add_u32 s{sSP}, s{sSP}, s{sT0}")

    def norm_tiles(self, acc, cs, dst):
        a = self.a
        for t in range(2):
            for m in range(2):
                r = acc + 8*t + 4*m
                for h in range(2):
                    a(f"v_pk_fma_f32 {V(r+2*h,2)}, {V(cs+4*t+2*h,2)}, {V(vST+2*m,2)}, {V(r+2*h,2)} op_sel_hi:[1,0,1]")
        for t in range(2):
            for m in range(2):
                r = acc + 8*t + 4*m
                for h in range(2):
                    a(f"v_pk_mul_f32 {V(r+2*h,2)}, {V(r+2*h,2)}, {V(vST+2*m,2)} op_sel:[0,1] op_sel_hi:[1,1]")
        for t in range(2):
            for m in range(2):
                r = acc + 8*t + 4*m
                for h in range(2):
                    a(f"v_cvt_pk_bf16_f32 v{dst+2*(2*t+m)+h}, v{r+2*h}, v{r+2*h+1}")

    def softmax(self, kb, wphi, p, ep, red):
        a = self.a
        for u in range(4):
            a(f"v_mfma_f32_16x16x16_bf16 {V(p+4*u,4)}, {V(wphi+2*(u>>1),2)}, {V(kb+2*u,2)}, 0")
        for u in range(4):
            r = p + 4*u
            a(f"v_max3_f32 v{red+2*u}, v{r}, v{r+1}, v{r+2}")
            a(f"v_max3_f32 v{red+2*u+1}, -v{r}, -v{r+1}, -v{r+2}")
        for u in range(4):
            r = p + 4*u
            a(f"v_max_f32 v{red+2*u}, v{red+2*u}, v{r+3}")
            a(f"v_max_f32_e64 v{red+2*u+1}, v{red+2*u+1}, -v{r+3}")
        g0 = [red, red+1, red+2, red+3]; g1 = [red+4, red+5, red+6, red+7]
        self.red4("v_max_f32", g0, g0[0]); self.red4("v_max_f32", g1, g1[0])
        a(f"v_mul_f32 v{g0[0]}, s{sL}, v{g0[0]}")
        a(f"v_mul_f32 v{g1[0]}, s{sL}, v{g1[0]}")
        self.bc4(g0); self.bc4(g1)
        for u in range(4):
            for h in range(2):
                a(f"v_pk_fma_f32 {V(ep+4*u+2*h,2)}, {V(p+4*u+2*h,2)}, {S(sL,2)}, {V(red+2*u,2)} op_sel_hi:[1,1,0] neg_lo:[0,0,1] neg_hi:[0,0,1]")
            for h in range(2):
                a(f"v_pk_fma_f32 {V(p+4*u+2*h,2)}, {V(p+4*u+2*h,2)}, {S(sL,2)}, {V(red+2*u,2)} op_sel:[0,0,1] op_sel_hi:[1,1,1] neg_lo:[1,0,1] neg_hi:[1,0,1]")
        for k in range(16):
            a(f"v_exp_f32 v{ep+k}, v{ep+k}")
            a(f"v_exp_f32 v{p+k}, v{p+k}")
        for u in range(4):
            a(f"v_add_f32 v{red+2*u}, v{ep+4*u}, v{ep+4*u+1}")
            a(f"v_add_f32 v{red+2*u+1}, v{p+4*u}, v{p+4*u+1}")
        for k in (2, 3):
            for u in range(4):
                a(f"v_add_f32 v{red+2*u}, v{red+2*u}, v{ep+4*u+k}")
                a(f"v_add_f32 v{red+2*u+1}, v{red+2*u+1}, v{p+4*u+k}")
        self.red4("v_add_f32", g0, g0[0]); self.red4("v_add_f32", g1, g1[0])
        a(f"v_rcp_f32 v{g0[0]}, v{g0[0]}")
        a(f"v_rcp_f32 v{g1[0]}, v{g1[0]}")
        self.bc4(g0); self.bc4(g1)
        for u in range(4):
            for h in range(2):
                a(f"v_pk_mul_f32 {V(ep+4*u+2*h,2)}, {V(ep+4*u+2*h,2)}, {V(red+2*u,2)} op_sel_hi:[1,0]")
                a(f"v_pk_mul_f32 {V(p+4*u+2*h,2)}, {V(p+4*u+2*h,2)}, {V(red+2*u,2)} op_sel:[0,1] op_sel_hi:[1,1]")

    def p1(self):
        a = self.a
        vA = 128; vCS = 40; vONES = 24; vID = 32; vWP = 34
        for k in range(4):
            a(f"v_mov_b32 v{28+k}, -1")
        a(f"s_lshl_b32 s{sT0}, s2, 13")
        a(f"s_lshl_b32 s{sT1}, s{sWV}, 11")
        a(f"s_add_u32 s{sT0}, s{sT0}, s{sT1}")
        a(f"s_add_u32 s{sT0}, s{sT0}, {CLR_OFF}")
        a(f"buffer_store_dwordx4 {V(28,4)}, v{vL16}, {srd(sWS)}, s{sT0} offen sc1")
        a(f"buffer_store_dwordx4 {V(28,4)}, v{vL16}, {srd(sWS)}, s{sT0} offen offset:1024 sc1")
        rpg = self.dma_voffs('pairN', 3072, 19, 20)
        a(f"s_lshl_b32 s{sT0}, s{sP}, 6")
        a(f"s_add_u32 s{sT1}, s{sT0}, 1024")
        self.dma_image(sWQKV, 3072, rpg, sT1, RK, 0, 8)
        a(f"s_add_u32 s{sT1}, s{sT0}, 2048")
        tkv = self.dma_image(sWQKV, 3072, rpg, sT1, RV, 0, 8)
        self.stg_voffs(1024, 19, 20)
        def xround(r):
            a(f"s_lshl_b32 s{sSO}, s{sKB}, 15")
            if r:
                a(f"s_add_u32 s{sSO}, s{sSO}, {512*r}")
            a(f"s_lshl_b32 m0, s{sWV}, 14")
            toks = []
            for b in range(4):
                if b:
                    a(f"s_add_u32 s{sSO}, s{sSO}, 128")
                    a(f"s_add_u32 m0, m0, 4096")
                toks.append(self.dma_group(vSTG, sX_))
            return toks
        tx0 = xround(0)
        a(f"v_lshlrev_b32 v19, 7, v{vG}")
        a(f"v_lshl_add_u32 v19, v{vI}, 1, v19")
        a(f"s_lshl_b32 s{sT1}, s{sP}, 10")
        for t in range(2):
            for j in range(4):
                a(f"buffer_load_ushort v{56+4*t+j}, v19, {srd(sWPHI)}, s{sT1} offen offset:{512*t+32*j}")
        for k in range(4):
            a(f"v_mov_b32 v{vONES+k}, 0x3f803f80")
        a(f"v_lshlrev_b32 v19, 2, v{vG}")
        a(f"v_sub_u32 v19, v{vI}, v19")
        a(f"v_mov_b32 v20, 0x3f80")
        a(f"v_mov_b32 v21, 0x3f800000")
        for h in range(2):
            a(f"v_cmp_eq_u32 vcc, {2*h}, v19")
            a(f"v_cndmask_b32 v{vID+h}, 0, v20, vcc")
            a(f"v_cmp_eq_u32 vcc, {2*h+1}, v19")
            a(f"v_cndmask_b32 v{vID+h}, v{vID+h}, v21, vcc")
        d2, kst = self.tr_addrs('pairN', vTR, RK, 19, 20)
        self.stg_rdaddr(R0, 16384, 19)
        a.wait(tkv)
        a("s_barrier")
        self.ts("w_ready")
        def arrive():
            a(f"s_getreg_b32 s{sT0}, hwreg(HW_REG_XCC_ID)")
            a(f"s_and_b32 s{sT0}, s{sT0}, 7")
            a(f"s_lshl_b32 s{sT0}, s{sT0}, 3")
            a(f"s_mov_b64 {S(sT1,2)}, 1")
            a(f"s_lshl_b64 {S(sT1,2)}, {S(sT1,2)}, s{sT0}")
            a(f"v_mov_b32 v20, s{sT1}")
            a(f"v_mov_b32 v21, s{sT2}")
            a(f"s_lshl_b32 s{sT0}, s{sXC}, 5")
            a("s_mov_b64 exec, 1")
            a(f"buffer_atomic_add_x2 {V(20,2)}, off, {srd(sDBG)}, s{sT0}")
            a("s_mov_b64 exec, -1")
        assert sT1 % 2 == 0
        a.ifonly(f"s_cmp_lg_u32 s{sWV}, 0", arrive)
        items = []
        for ks in range(16):
            for u in range(4):
                c = V(vCS+4*u, 4) if ks else "0"
                items.append((vTR + (u & 1), ks*kst + (u >> 1)*32768, d2,
                              [f"v_mfma_f32_16x16x32_bf16 {V(vCS+4*u,4)}, {{b}}, {V(vONES,4)}, {c}"]))
        self.gemm(items, 96, 8, 6, 2)
        for t in range(2):
            for h in range(2):
                a(f"v_lshl_or_b32 v{vWP+2*t+h}, v{56+4*t+2*h+1}, 16, v{56+4*t+2*h}")
        def xread(r, toks):
            for b in range(4):
                a.wait(toks[b])
                for k2 in range(2):
                    for m in range(2):
                        ks = 8*r + 2*b + k2
                        a(f"ds_read_b128 {V(vA+8*ks+4*m,4)}, v{vRDA+k2} offset:{b*4096+m*2048}")
        xread(0, tx0)
        a("s_waitcnt lgkmcnt(0)")
        tx1 = xround(1)
        a(f"s_lshl_b32 s{sT0}, s{sP}, 6")
        tq = self.dma_image(sWQKV, 3072, rpg, sT0, RQ, 0, 8)
        for k in range(4):
            a(f"v_mov_b32 v{28+k}, 0")
        def stats(r):
            for ks in range(8*r, 8*r+8):
                for k in range(4):
                    for m in range(2):
                        x = vA + 8*ks + 4*m + k
                        a(f"v_dot2c_f32_bf16 v{28+2*m}, v{x}, v{vONES}")
                        a(f"v_dot2c_f32_bf16 v{29+2*m}, v{x}, v{x}")
        def kvgemm(r):
            items = []
            for ks in range(8*r, 8*r+8):
                for u in range(4):
                    ms = []
                    for m in range(2):
                        d = V(64+8*u+4*m, 4)
                        ms.append(f"v_mfma_f32_16x16x32_bf16 {d}, {{b}}, {V(vA+8*ks+4*m,4)}, {d if ks else 0}")
                    items.append((vTR + (u & 1), ks*kst + (u >> 1)*32768, d2, ms))
            self.gemm(items, 96, 8, 5, 2)
        stats(0)
        kvgemm(0)
        self.ts("kv_half")
        xread(1, tx1)
        a("s_waitcnt lgkmcnt(0)")
        rpg = self.dma_voffs('quad', 1024, 19, 20)
        a(f"s_lshl_b32 s{sT0}, s{sC}, 7")
        self.two = self.dma_image(sWO, 1024, rpg, sT0, R0, 0, 16)
        stats(1)
        kvgemm(1)
        self.ts("kv_gemm")
        g = [28, 29, 30, 31]
        self.red4("v_add_f32", g, 28)
        self.bc4(g)
        for m in range(2):
            a(f"v_mul_f32 v{vST+2*m}, {FH(-1.0/512)}, v{28+2*m}")
            a(f"v_mul_f32 v{29+2*m}, {FH(1.0/512)}, v{29+2*m}")
        for m in range(2):
            a(f"v_fma_f32 v{29+2*m}, -v{vST+2*m}, v{vST+2*m}, v{29+2*m}")
        for m in range(2):
            a(f"v_max_f32 v{29+2*m}, 0, v{29+2*m}")
        for m in range(2):
            a(f"v_add_f32 v{29+2*m}, {FH(1e-5)}, v{29+2*m}")
        for m in range(2):
            a(f"v_rsq_f32 v{vST+2*m+1}, v{29+2*m}")
        self.norm_tiles(80, vCS+8, 96)
        for u in range(4):
            a(f"v_mfma_f32_16x16x16_bf16 {V(80+4*u,4)}, {V(96+2*u,2)}, {V(vID,2)}, 0")
        self.norm_tiles(64, vCS, 112)
        for u in range(4):
            for h in range(2):
                a(f"v_cvt_pk_bf16_f32 v{104+2*u+h}, v{80+4*u+2*h}, v{80+4*u+2*h+1}")
        self.softmax(112, vWP, 64, 80, 120)
        for base in (80, 64):
            for u in range(4):
                for h in range(2):
                    a(f"v_cvt_pk_bf16_f32 v{base+4*u+h}, v{base+4*u+2*h}, v{base+4*u+2*h+1}")
        for u in range(4):
            a(f"v_mfma_f32_16x16x16_bf16 {V(40+4*u,4)}, {V(80+4*u,2)}, {V(vID,2)}, 0")
            a(f"v_mfma_f32_16x16x16_bf16 {V(112+4*u,4)}, {V(64+4*u,2)}, {V(vID,2)}, 0")
        for sg, base in ((0, 40), (1, 112)):
            for t in range(2):
                for m in range(2):
                    for h in range(2):
                        r = base + 4*(2*t+m) + 2*h
                        a(f"v_cvt_pk_bf16_f32 v{64+4*(2*t+sg)+2*m+h}, v{r}, v{r+1}")
        for qd in range(4):
            a(f"v_mfma_f32_16x16x32_bf16 {V(80+4*qd,4)}, {V(64+4*qd,4)}, {V(104+4*(qd>>1),4)}, 0")
            a(f"v_mfma_f32_16x16x32_bf16 {V(112+4*qd,4)}, {V(64+4*qd,4)}, {V(vONES,4)}, 0")
        self.ts("k_epi")
        def check():
            lp = a.label('Linit'); ld = a.label('Linitd')
            a(f"v_and_b32 v19, 7, v{vLANE}")
            a(f"v_lshlrev_b32 v19, 5, v19")
            a(f"{lp}:")
            a(f"buffer_load_dwordx2 {V(40,2)}, v19, {srd(sDBG)}, 0 offen sc1")
            a(f"s_sub_u32 s{sSPIN}, s{sSPIN}, 1")
            a(f"s_cbranch_scc1 {ld}")
            a(f"v_sad_u8 v42, v40, 0, 0")
            a(f"v_sad_u8 v42, v41, 0, v42")
            a(f"v_cmp_gt_u32 vcc, 32, v42")
            a(f"s_cbranch_vccnz {lp}")
            a(f"{ld}:")
            a(f"s_max_i32 s{sSPIN}, s{sSPIN}, 0")
            a("s_waitcnt vmcnt(0)")
            a(f"v_or_b32 v40, v40, v41")
            a(f"v_and_b32 v40, 0x20202020, v40")
            a(f"v_readlane_b32 s{sT0}, v40, s{sXC}")
            a(f"s_cmp_eq_u32 s{sT0}, 0")
            a(f"s_cselect_b32 s{sMODE}, 1, 0")
        a.ifonly(f"s_cmp_lg_u32 s{sWV}, 0", check)
        a.wait(tq)
        self.barrier()
        a(f"s_lshl_b32 s{sT0}, s{sWV}, 12")
        a(f"s_add_u32 s{sT0}, s{sT0}, {SCR}")
        a(f"v_add_u32 v19, s{sT0}, v{vL16}")
        for qd in range(4):
            a(f"ds_write_b128 v19, {V(80+4*qd,4)} offset:{qd*1024}")
        a(f"s_lshl_b32 s{sT0}, s{sWV}, 8")
        a(f"s_add_u32 s{sT0}, s{sT0}, {SCR+16384}")
        a(f"v_lshl_add_u32 v38, v{vG}, 4, s{sT0}")
        a(f"s_mov_b32 exec_lo, 0x00010001")
        a(f"s_mov_b32 exec_hi, 0x00010001")
        for qd in range(4):
            a(f"ds_write_b128 v38, {V(112+4*qd,4)} offset:{qd*64}")
        a("s_mov_b64 exec, -1")
        a(f"v_mov_b32 v38, {SCR+17408}")
        a(f"v_mov_b32 v39, s{sMODE}")
        a.ifonly(f"s_cmp_lg_u32 s{sWV}, 0", lambda: a(f"ds_write_b32 v38, v39"))
        self.barrier()
        a(f"ds_read_b32 v39, v38")
        a(f"s_lshl_b32 s{sT0}, s{sWV}, 10")
        a(f"s_add_u32 s{sT0}, s{sT0}, {SCR}")
        a(f"v_add_u32 v19, s{sT0}, v{vL16}")
        for w in range(4):
            a(f"ds_read_b128 {V(80+4*w,4)}, v19 offset:{w*4096}")
        a(f"s_lshl_b32 s{sT0}, s{sWV}, 6")
        a(f"s_add_u32 s{sT0}, s{sT0}, {SCR+16384}")
        a(f"v_lshl_add_u32 v38, v{vG}, 4, s{sT0}")
        for w in range(4):
            a(f"ds_read_b128 {V(112+4*w,4)}, v38 offset:{w*256}")
        a(f"v_readfirstlane_b32 s{sMODE}, v39")
        if self.force_slow:
            a(f"s_mov_b32 s{sMODE}, 1")
        for base in (80, 112):
            for h in range(2):
                a(f"v_pk_add_f32 {V(base+2*h,2)}, {V(base+2*h,2)}, {V(base+4+2*h,2)}")
                a(f"v_pk_add_f32 {V(base+8+2*h,2)}, {V(base+8+2*h,2)}, {V(base+12+2*h,2)}")
            for h in range(2):
                a(f"v_pk_add_f32 {V(base+2*h,2)}, {V(base+2*h,2)}, {V(base+8+2*h,2)}")
        a(f"s_lshl_b32 s{sT0}, s{sP}, 2")
        a(f"s_add_u32 s{sT0}, s{sT0}, s{sWV}")
        a(f"s_lshl_b32 s{sT0}, s{sT0}, 4")
        a(f"s_add_u32 s{sT1}, s{sT0}, s{sRB}")
        a(f"s_lshl_b32 s{sT2}, s{sT1}, 10")
        a(f"s_add_u32 s{sT2}, s{sT2}, {KV_OFF}")
        a(f"buffer_store_dwordx4 {V(80,4)}, v{vL16}, {srd(sWS)}, s{sT2} offen sc1")
        a(f"s_lshl_b32 s{sT2}, s{sT1}, 6")
        a(f"s_add_u32 s{sT2}, s{sT2}, {KVZ_OFF}")
        a(f"v_lshlrev_b32 v38, 4, v{vG}")
        a(f"s_mov_b32 exec_lo, 0x00010001")
        a(f"s_mov_b32 exec_hi, 0x00010001")
        a(f"buffer_store_dwordx4 {V(112,4)}, v38, {srd(sWS)}, s{sT2} offen sc1")
        a("s_mov_b64 exec, -1")
        self.ts("kv_pub")
        a(f"v_add_u32 v{vTR}, {RQ-RK}, v{vTR}")
        a(f"v_add_u32 v{vTR+1}, {RQ-RK}, v{vTR+1}")
        items = []
        for ks in range(16):
            for t in range(2):
                ms = []
                for m in range(2):
                    d = V(64+8*t+4*m, 4)
                    ms.append(f"v_mfma_f32_16x16x32_bf16 {d}, {{b}}, {V(vA+8*ks+4*m,4)}, {d if ks else 0}")
                d = V(vCS+4*t, 4)
                ms.append(f"v_mfma_f32_16x16x32_bf16 {d}, {{b}}, {V(vONES,4)}, {d if ks else 0}")
                items.append((vTR + t, ks*kst, d2, ms))
        self.gemm(items, 84, 6, 4, 2)
        self.ts("q_gemm")
        self.norm_tiles(64, vCS, 112)
        self.softmax(112, vWP, 64, 80, 120)
        for u in range(4):
            for h in range(2):
                a(f"v_cvt_pk_bf16_f32 v{96+4*u+h}, v{80+4*u+2*h}, v{80+4*u+2*h+1}")
                a(f"v_cvt_pk_bf16_f32 v{96+4*u+2+h}, v{64+4*u+2*h}, v{64+4*u+2*h+1}")
        self.ts("q_epi")
        lp = a.label('Lkv'); ld = a.label('Lkvd')
        a(f"v_lshlrev_b32 v38, 4, v{vG}")
        a(f"v_lshl_add_u32 v38, v{vI}, 6, v38")
        a(f"s_lshl_b32 s{sT1}, s{sT0}, 6")
        a(f"s_add_u32 s{sT1}, s{sT1}, {KVZ_OFF}")
        a(f"s_lshl_b32 s{sT0}, s{sT0}, 10")
        a(f"s_add_u32 s{sT0}, s{sT0}, {KV_OFF}")
        a(f"{lp}:")
        a(f"buffer_load_dwordx4 {V(192,4)}, v38, {srd(sWS)}, s{sT1} offen sc1")
        a(f"s_mov_b32 s{sT2}, s{sT0}")
        for rb in range(16):
            if rb and rb % 4 == 0:
                a(f"s_add_u32 s{sT2}, s{sT2}, 4096")
            a(f"buffer_load_dwordx4 {V(128+4*rb,4)}, v{vL16}, {srd(sWS)}, s{sT2} offen offset:{(rb%4)*1024} sc1")
        a(f"s_sub_u32 s{sSPIN}, s{sSPIN}, 16")
        a(f"s_cbranch_scc1 {ld}")
        a(f"v_max_u32 v39, v192, v193")
        a(f"v_max3_u32 v39, v39, v194, v195")
        for k in range(32):
            a(f"v_max3_u32 v39, v39, v{128+2*k}, v{129+2*k}")
        a(f"v_cmp_eq_u32 vcc, -1, v39")
        a(f"s_cbranch_vccnz {lp}")
        a(f"{ld}:")
        a(f"s_max_i32 s{sSPIN}, s{sSPIN}, 0")
        a("s_waitcnt vmcnt(0)")
        n = 16
        while n > 1:
            n //= 2
            for k in range(n):
                for h in range(2):
                    a(f"v_pk_add_f32 {V(128+4*k+2*h,2)}, {V(128+4*k+2*h,2)}, {V(128+4*(k+n)+2*h,2)}")
        for rot in (8, 4, 2, 1):
            for k in range(4):
                a(f"v_add_f32_dpp v{192+k}, v{192+k}, v{192+k} row_ror:{rot} row_mask:0xf bank_mask:0xf")
        for h in range(2):
            a(f"v_cvt_pk_bf16_f32 v{128+h}, v{128+2*h}, v{129+2*h}")
        for h in range(2):
            a(f"v_cvt_pk_bf16_f32 v{130+h}, v{192+2*h}, v{193+2*h}")
        self.ts("kv_gath")
        a(f"s_lshl_b32 s{sT0}, s{sWV}, 10")
        a(f"s_add_u32 s{sT0}, s{sT0}, {RK}")
        a(f"v_add_u32 v19, s{sT0}, v{vL16}")
        a(f"ds_write_b128 v19, {V(128,4)}")
        self.barrier()
        a(f"v_add_u32 v19, {RK}, v{vL16}")
        for t in range(2):
            for sg in range(2):
                a(f"ds_read_b64 {V(132+4*t+2*sg,2)}, v19 offset:{(2*t+sg)*1024}")
                a(f"ds_read_b64 {V(140+4*t+2*sg,2)}, v19 offset:{(2*t+sg)*1024+8}")
        for u in range(4):
            a(f"v_mfma_f32_16x16x32_bf16 {V(80+4*u,4)}, {V(140+4*(u>>1),4)}, {V(96+4*u,4)}, 0")
        for u in range(4):
            a(f"v_mfma_f32_16x16x32_bf16 {V(64+4*u,4)}, {V(132+4*(u>>1),4)}, {V(96+4*u,4)}, 0")
        for u in range(4):
            a(f"v_add_f32 v{80+4*u}, {FH(1e-6)}, v{80+4*u}")
        for u in range(4):
            a(f"v_rcp_f32 v{80+4*u}, v{80+4*u}")
        for u in range(4):
            for h in range(2):
                a(f"v_pk_mul_f32 {V(64+4*u+2*h,2)}, {V(64+4*u+2*h,2)}, {V(80+4*u,2)} op_sel_hi:[1,0]")
        for t in range(2):
            for m in range(2):
                for h in range(2):
                    r = 64 + 4*(2*t+m) + 2*h
                    a(f"v_cvt_pk_bf16_f32 v{112+4*m+2*t+h}, v{r}, v{r+1}")
        a(f"s_lshl_b32 s{sT0}, s{sKB}, 15")
        a(f"s_lshl_b32 s{sT1}, s{sP}, 10")
        a(f"s_add_u32 s{sT0}, s{sT0}, s{sT1}")
        a(f"s_add_u32 s{sT1}, s{sT0}, {O_OFF+16384}")
        if O_OFF:
            a(f"s_add_u32 s{sT0}, s{sT0}, {O_OFF}")
        self.lst(f"buffer_store_dwordx4 {V(112,4)}, v{vL16}, {srd(sWS)}, s{sT0} offen\n"
                 f"buffer_store_dwordx4 {V(116,4)}, v{vL16}, {srd(sWS)}, s{sT1} offen")
        a(f"s_lshl_b32 s{sT0}, s{sKB}, 7")
        a(f"s_lshl_b32 s{sT1}, s{sP}, 2")
        a(f"s_add_u32 s{sT0}, s{sT0}, s{sT1}")
        a(f"s_add_u32 s{sT0}, s{sT0}, {F2_OFF}")
        self.flag(sT0)
        self.ts("o_pub")

    def win_part(self, first):
        a = self.a
        base = R1F if first else R0
        colb = 1792 if first else 0
        def quad():
            rpg = self.dma_voffs('quad', 3584, 19, 38)
            a(f"s_lshl_b32 s{sT0}, s{sN+3}, 5")
            if colb:
                a(f"s_add_u32 s{sT0}, s{sT0}, {colb}")
            return self.dma_image(sWIN, 3584, rpg, sT0, base, 0, 16)
        def triple():
            rpg = self.dma_voffs('pairP', 3584, 19, 38)
            a(f"s_lshl_b32 s{sT0}, s{sN+1}, 5")
            if colb:
                a(f"s_add_u32 s{sT0}, s{sT0}, {colb}")
            self.dma_image(sWIN, 3584, rpg, sT0, base, 0, 8)
            rpg = self.dma_voffs('single', 3584, 19, 38)
            a(f"s_lshl_b32 s{sT0}, s{sN}, 5")
            if colb:
                a(f"s_add_u32 s{sT0}, s{sT0}, {colb}")
            return self.dma_image(sWIN, 3584, rpg, sT0, base + 32768, 0, 4)
        if first:
            return a.ifelse(f"s_bitcmp1_b32 s{sP}, 0", quad, triple)
        return a.ifelse(f"s_bitcmp1_b32 s{sP}, 0", triple, quad)

    def wsp_setup(self):
        self.stg_voffs(4096, 19, 38)
        self.stg_rdaddr(STG, 8192, 19)

    def wsp_issue(self, r):
        a = self.a
        a(f"s_lshr_b32 s{sSO}, s{sROT+r}, 4")
        a(f"s_add_u32 s{sSO}, s{sSO}, s{sSP}")
        a(f"s_lshl_b32 s{sT4}, s{sWV}, 13")
        a(f"s_add_u32 m0, s{sT4}, {STG}")
        self.dma_group(vSTG, sWSP)
        a(f"s_add_u32 s{sSO}, s{sSO}, {32*4096}")
        a(f"s_add_u32 m0, m0, 4096")
        return self.dma_group(vSTG, sWSP)

    def wsp_read(self, r, tok):
        a = self.a
        a.wait(tok)
        t = None
        for k2 in range(2):
            for mt in range(4):
                t = a(f"ds_read_b128 {A(32*r+16*k2+4*mt,4)}, v{vRDA+k2} offset:{(mt>>1)*4096+(mt&1)*2048}")
        return t

    def rowoff(self, dst, t0):
        a = self.a
        a(f"v_lshrrev_b32 v{t0}, 2, v{vI}")
        a(f"v_lshlrev_b32 v{t0}, 3, v{t0}")
        a(f"v_and_or_b32 v{t0}, v{vI}, 3, v{t0}")
        a(f"s_lshr_b32 s{sT3}, s{sMT}, 1")
        a(f"s_lshl_b32 s{sT3}, s{sT3}, 5")
        a(f"s_and_b32 s{sT4}, s{sMT}, 1")
        a(f"s_lshl_b32 s{sT4}, s{sT4}, 2")
        a(f"s_add_u32 s{sT3}, s{sT3}, s{sT4}")
        a(f"v_add_u32 v{dst}, s{sT3}, v{t0}")

    def p2a(self):
        a = self.a
        vA = 128; acc = 64
        self.barrier()
        self.twin1 = self.win_part(True)
        self.wsp_setup()
        self.rowoff(38, 19)
        a(f"v_lshlrev_b32 v38, 10, v38")
        a(f"v_lshl_add_u32 v38, v{vG}, 3, v38")
        a(f"s_lshl_b32 s{sT0}, s{sC}, 7")
        for t in range(4):
            a(f"buffer_load_dwordx2 {V(vH+2*t,2)}, v38, {srd(sX_)}, s{sT0} offen offset:{32*t}")
        d2, kst = self.tr_addrs('quad', vTR, R0, 19, 38)
        a(f"s_lshr_b32 s{sT0}, s{sMT}, 1")
        a(f"s_lshl_b32 s{sT0}, s{sT0}, 7")
        a(f"s_add_u32 s{sT0}, s{sT0}, {F2_OFF}")
        a(f"v_lshl_add_u32 v38, v{vI}, 2, s{sT0}")
        self.poll(38, 39, 1)
        self.ts("o_rdy")
        a(f"s_lshl_b32 s{sT0}, s{sMT}, 14")
        if O_OFF:
            a(f"s_add_u32 s{sT0}, s{sT0}, {O_OFF}")
        for ks in range(16):
            if ks and ks % 4 == 0:
                a(f"s_add_u32 s{sT0}, s{sT0}, 4096")
            a(f"buffer_load_dwordx4 {V(vA+4*ks,4)}, v{vL16}, {srd(sWS)}, s{sT0} offen offset:{(ks%4)*1024} sc1")
        items = []
        for ks in range(16):
            for t in range(4):
                d = V(acc+4*t, 4)
                items.append((vTR + t, ks*kst, d2, [f"v_mfma_f32_16x16x32_bf16 {d}, {{b}}, {V(vA+4*ks,4)}, {d if ks else 0}"]))
        self.gemm(items, 192, 12, 7, 4)
        self.ts("h_gemm")
        for t in range(4):
            for h in range(2):
                a(f"v_lshlrev_b32 v{80+4*t+2*h}, 16, v{vH+2*t+h}")
                a(f"v_and_b32 v{81+4*t+2*h}, 0xffff0000, v{vH+2*t+h}")
        for k in range(8):
            a(f"v_pk_add_f32 {V(acc+2*k,2)}, {V(acc+2*k,2)}, {V(80+2*k,2)}")
        a(f"v_pk_add_f32 {V(80,2)}, {V(acc,2)}, {V(acc+2,2)}")
        a(f"v_pk_mul_f32 {V(82,2)}, {V(acc,2)}, {V(acc,2)}")
        a(f"v_pk_fma_f32 {V(82,2)}, {V(acc+2,2)}, {V(acc+2,2)}, {V(82,2)}")
        for k in range(2, 8):
            a(f"v_pk_add_f32 {V(80,2)}, {V(80,2)}, {V(acc+2*k,2)}")
            a(f"v_pk_fma_f32 {V(82,2)}, {V(acc+2*k,2)}, {V(acc+2*k,2)}, {V(82,2)}")
        a(f"v_add_f32 v80, v80, v81")
        a(f"v_add_f32 v81, v82, v83")
        self.allred2(80, 81, 82)
        a(f"v_max_f32 v81, 0, v81")
        a(f"s_lshl_b32 s{sT0}, s{sMT}, 10")
        a(f"s_add_u32 s{sT0}, s{sT0}, {ST1_OFF}")
        a(f"s_lshl_b32 s{sT1}, s{sC}, 3")
        a(f"s_add_u32 s{sT1}, s{sT1}, s{sT0}")
        a(f"v_lshlrev_b32 v38, 6, v{vI}")
        a(f"s_mov_b64 exec, 0xffff")
        self.lst(f"buffer_store_dwordx2 {V(80,2)}, v38, {srd(sWS)}, s{sT1} offen")
        a(f"s_mov_b64 exec, -1")
        a(f"v_lshl_add_u32 v38, v{vG}, 4, v38")
        for k in range(8):
            a(f"v_cvt_pk_bf16_f32 v{vH+k}, v{acc+2*k}, v{acc+2*k+1}")
        lp = a.label('Lst1'); ld = a.label('Lst1d')
        a(f"{lp}:")
        a(f"buffer_load_dwordx4 {V(84,4)}, v38, {srd(sWS)}, s{sT0} offen sc1")
        a(f"s_sub_u32 s{sSPIN}, s{sSPIN}, 1")
        a(f"s_cbranch_scc1 {ld}")
        a(f"v_max_u32 v39, v85, v87")
        a(f"v_cmp_eq_u32 vcc, -1, v39")
        a(f"s_cbranch_vccnz {lp}")
        a(f"{ld}:")
        a(f"s_max_i32 s{sSPIN}, s{sSPIN}, 0")
        a("s_waitcnt vmcnt(0)")
        a(f"v_pk_add_f32 {V(80,2)}, {V(84,2)}, {V(86,2)}")
        self.allred2(80, 81, 82)
        self.meanrstd(80, 81, 512)
        for k in range(8):
            a(f"v_pk_fma_f32 {V(acc+2*k,2)}, {V(acc+2*k,2)}, {V(80,2)}, {V(80,2)} op_sel:[0,1,0] op_sel_hi:[1,1,0]")
        for k in range(8):
            a(f"v_cvt_pk_bf16_f32 v{84+k}, v{acc+2*k}, v{acc+2*k+1}")
        a(f"s_lshl_b32 s{sT0}, s{sMT}, 14")
        a(f"s_lshl_b32 s{sT1}, s{sC}, 11")
        a(f"s_add_u32 s{sT0}, s{sT0}, s{sT1}")
        a(f"s_add_u32 s{sT0}, s{sT0}, {HN_OFF}")
        self.lst(f"buffer_store_dwordx4 {V(84,4)}, v{vL16}, {srd(sWS)}, s{sT0} offen\n"
                 f"buffer_store_dwordx4 {V(88,4)}, v{vL16}, {srd(sWS)}, s{sT0} offen offset:1024")
        a(f"s_lshr_b32 s{sT0}, s{sMT}, 1")
        a(f"s_lshl_b32 s{sT0}, s{sT0}, 7")
        a(f"s_and_b32 s{sT1}, s{sMT}, 1")
        a(f"s_lshl_b32 s{sT1}, s{sT1}, 3")
        a(f"s_add_u32 s{sT1}, s{sT1}, s{sC}")
        a(f"s_lshl_b32 s{sT1}, s{sT1}, 2")
        a(f"s_add_u32 s{sT0}, s{sT0}, s{sT1}")
        a(f"s_add_u32 s{sT0}, s{sT0}, {F3_OFF}")
        self.flag(sT0)
        self.ts("hn_pub")

    def allred2(self, x, y, t):
        a = self.a
        a(f"v_permlane32_swap_b32 v{x}, v{y}")
        a(f"v_add_f32 v{x}, v{x}, v{y}")
        a(f"v_mov_b32 v{t}, v{x}")
        a(f"v_permlane16_swap_b32 v{x}, v{t}")
        a(f"v_add_f32 v{x}, v{x}, v{t}")
        a(f"v_mov_b32 v{y}, v{x}")
        a(f"v_permlane32_swap_b32 v{x}, v{y}")

    def meanrstd(self, s, q, n):
        a = self.a
        a(f"v_mul_f32 v{s}, {FH(-1.0/n)}, v{s}")
        a(f"v_mul_f32 v{q}, {FH(1.0/n)}, v{q}")
        a(f"v_fma_f32 v{q}, -v{s}, v{s}, v{q}")
        a(f"v_max_f32 v{q}, 0, v{q}")
        a(f"v_add_f32 v{q}, {FH(1e-5)}, v{q}")
        a(f"v_rsq_f32 v{q}, v{q}")
        a(f"v_mul_f32 v{s}, v{s}, v{q}")

    def gelu(self, r, n, tmp, vC1):
        a = self.a
        for c0 in range(0, n, 16):
            m = min(16, n - c0)
            for k in range(0, m, 2):
                a(f"v_pk_mul_f32 {V(tmp+k,2)}, {V(r+c0+k,2)}, {V(r+c0+k,2)}")
            for k in range(0, m, 2):
                a(f"v_pk_fma_f32 {V(tmp+k,2)}, {V(tmp+k,2)}, {S(sC2,2)}, {V(vC1,2)}")
            for k in range(0, m, 2):
                a(f"v_pk_mul_f32 {V(tmp+k,2)}, {V(tmp+k,2)}, {V(r+c0+k,2)}")
            for k in range(m):
                a(f"v_exp_f32 v{tmp+k}, v{tmp+k}")
            for k in range(0, m, 2):
                a(f"v_pk_add_f32 {V(tmp+k,2)}, {V(tmp+k,2)}, {S(sONE,2)}")
            for k in range(m):
                a(f"v_rcp_f32 v{tmp+k}, v{tmp+k}")
            for k in range(0, m, 2):
                a(f"v_pk_mul_f32 {V(r+c0+k,2)}, {V(r+c0+k,2)}, {V(tmp+k,2)}")

    def p2b(self):
        a = self.a
        vA = 128
        self.barrier()
        self.twin2 = self.win_part(False)
        a(f"v_mov_b32 v32, {FH(self.c1)}")
        a(f"v_mov_b32 v33, {FH(self.c1)}")
        a(f"s_lshl_b32 s{sT0}, s{sKB}, 7")
        a(f"s_add_u32 s{sT0}, s{sT0}, {F3_OFF}")
        a(f"v_lshl_add_u32 v38, v{vI}, 2, s{sT0}")
        self.poll(38, 39, 1)
        self.ts("hn_rdy")
        a(f"s_lshl_b32 s{sT0}, s{sKB}, 15")
        a(f"s_add_u32 s{sT0}, s{sT0}, {HN_OFF}")
        a(f"s_add_u32 s{sT1}, s{sT0}, 16384")
        for ks in range(16):
            if ks and ks % 4 == 0:
                a(f"s_add_u32 s{sT0}, s{sT0}, 4096")
                a(f"s_add_u32 s{sT1}, s{sT1}, 4096")
            for m in range(2):
                a(f"buffer_load_dwordx4 {V(vA+8*ks+4*m,4)}, v{vL16}, {srd(sWS)}, s{sT0+m} offen offset:{(ks%4)*1024} sc1")
        a.ifelse(f"s_bitcmp1_b32 s{sP}, 0", lambda: self.p2b_body(True), lambda: self.p2b_body(False))

    def tileset(self, quad, base):
        if quad:
            d2, kst = self.tr_addrs('quad', vTR, base, 19, 38)
            return [(vTR+t, d2, kst, 3+t) for t in range(4)]
        d2, kst = self.tr_addrs('pairP', vTR, base, 19, 38)
        e2, est = self.tr_addrs('single', vTR+2, base + 32768, 19, 38)
        return [(vTR, d2, kst, 1), (vTR+1, d2, kst, 2), (vTR+2, e2, est, 0)]

    def p2b_body(self, kindA):
        a = self.a
        vA = 128; z2 = 40; ring = 96
        n2 = 4 if kindA else 3
        n1 = 7 - n2
        z1 = z2 + 8*n2
        tiles2 = self.tileset(kindA, R1F)
        items = []
        for ks in range(16):
            for u, (ad, d2, kst, _) in enumerate(tiles2):
                ms = []
                for m in range(2):
                    d = V(z2+8*u+4*m, 4)
                    ms.append(f"v_mfma_f32_16x16x32_bf16 {d}, {V(vA+8*ks+4*m,4)}, {{b}}, {d if ks else 0}")
                items.append((ad, ks*kst, d2, ms))
        self.gemm(items, ring, 8, 5, 2)
        self.ts("z2_gemm")
        self.gelu(z2, 8*n2, ring, 32)
        for k in range(0, 8, 2):
            a(f"v_pk_add_f32 {V(96+k,2)}, {V(z2+k,2)}, {V(z2+8+k,2)}")
            a(f"v_pk_mul_f32 {V(104+k,2)}, {V(z2+k,2)}, {V(z2+k,2)}")
        for u in range(1, n2):
            for k in range(0, 8, 2):
                if u > 1:
                    a(f"v_pk_add_f32 {V(96+k,2)}, {V(96+k,2)}, {V(z2+8*u+k,2)}")
                a(f"v_pk_fma_f32 {V(104+k,2)}, {V(z2+8*u+k,2)}, {V(z2+8*u+k,2)}, {V(104+k,2)}")
        for base in (96, 104):
            for k in range(4):
                a(f"v_add_f32_dpp v{base+k}, v{base+k}, v{base+k} row_ror:8 row_mask:0xf bank_mask:0x3")
            for k in range(4):
                a(f"v_add_f32_dpp v{base+k}, v{base+4+k}, v{base+4+k} row_ror:8 row_mask:0xf bank_mask:0xc")
        for base in (96, 104):
            for k in range(2):
                a(f"v_add_f32_dpp v{base+k}, v{base+k}, v{base+k} row_half_mirror row_mask:0xf bank_mask:0x5")
            for k in range(2):
                a(f"v_add_f32_dpp v{base+k}, v{base+2+k}, v{base+2+k} row_half_mirror row_mask:0xf bank_mask:0xa")
        for qp in ("[1,0,3,2]", "[2,3,0,1]"):
            for r in (96, 97, 104, 105):
                a(f"v_add_f32_dpp v{r}, v{r}, v{r} quad_perm:{qp} row_mask:0xf bank_mask:0xf")
        a(f"v_and_b32 v19, 1, v{vLANE}")
        a(f"v_cmp_eq_u32 vcc, 1, v19")
        a(f"v_cndmask_b32 v96, v96, v97, vcc")
        a(f"v_cndmask_b32 v97, v104, v105, vcc")
        a(f"v_max_f32 v97, 0, v97")
        a(f"v_lshrrev_b32 v38, 2, v{vLANE}")
        a(f"v_lshl_or_b32 v38, v38, 1, v19")
        a(f"v_lshlrev_b32 v38, 7, v38")
        a(f"s_lshl_b32 s{sT0}, s{sKB}, 12")
        a(f"s_lshl_b32 s{sT1}, s{sP}, 3")
        a(f"s_add_u32 s{sT0}, s{sT0}, s{sT1}")
        a(f"s_add_u32 s{sT0}, s{sT0}, {ST2_OFF}")
        a(f"s_mov_b32 exec_lo, 0x33333333")
        a(f"s_mov_b32 exec_hi, 0x33333333")
        self.lst(f"buffer_store_dwordx2 {V(96,2)}, v38, {srd(sWS)}, s{sT0} offen")
        a(f"s_mov_b64 exec, -1")
        self.ts("st2_pub")
        a.wait(*self.twin2)
        self.barrier()
        tiles1 = self.tileset(not kindA, R0)
        items = []
        for ks in range(16):
            for u, (ad, d2, kst, _) in enumerate(tiles1):
                ms = []
                for m in range(2):
                    d = V(z1+8*u+4*m, 4)
                    ms.append(f"v_mfma_f32_16x16x32_bf16 {d}, {{b}}, {V(vA+8*ks+4*m,4)}, {d if ks else 0}")
                items.append((ad, ks*kst, d2, ms))
        self.gemm(items, ring, 8, 5, 2)
        self.ts("z1_gemm")
        a(f"v_lshlrev_b32 v38, 6, v{vLANE}")
        a(f"s_lshl_b32 s{sT0}, s{sKB}, 12")
        a(f"s_add_u32 s{sT0}, s{sT0}, {ST2_OFF}")
        lp = a.label('Lst2'); ld = a.label('Lst2d')
        a(f"{lp}:")
        for k in range(4):
            a(f"buffer_load_dwordx4 {V(128+4*k,4)}, v38, {srd(sWS)}, s{sT0} offen offset:{16*k} sc1")
        a(f"s_sub_u32 s{sSPIN}, s{sSPIN}, 1")
        a(f"s_cbranch_scc1 {ld}")
        a(f"v_max_u32 v39, v129, v131")
        for k in range(1, 4):
            a(f"v_max3_u32 v39, v39, v{129+4*k}, v{131+4*k}")
        a(f"v_cmp_eq_u32 vcc, -1, v39")
        a(f"s_cbranch_vccnz {lp}")
        a(f"{ld}:")
        a(f"s_max_i32 s{sSPIN}, s{sSPIN}, 0")
        a("s_waitcnt vmcnt(0)")
        for k in range(4):
            a(f"v_pk_add_f32 {V(128+2*k,2)}, {V(128+2*k,2)}, {V(136+2*k,2)}")
        for k in range(2):
            a(f"v_pk_add_f32 {V(128+2*k,2)}, {V(128+2*k,2)}, {V(132+2*k,2)}")
        a(f"v_pk_add_f32 {V(128,2)}, {V(128,2)}, {V(130,2)}")
        for r in (128, 129):
            a(f"v_add_f32_dpp v{r}, v{r}, v{r} quad_perm:[1,0,3,2] row_mask:0xf bank_mask:0xf")
        self.meanrstd(128, 129, 896)
        a(f"v_and_b32 v19, 1, v{vLANE}")
        a(f"v_cmp_eq_u32 vcc, 1, v19")
        a(f"v_cndmask_b32 v128, v128, v129, vcc")
        a(f"v_lshlrev_b32 v19, 7, v19")
        a(f"v_lshrrev_b32 v38, 1, v{vLANE}")
        a(f"v_lshl_add_u32 v19, v38, 2, v19")
        a(f"s_lshl_b32 s{sT0}, s{sWV}, 8")
        a(f"s_add_u32 s{sT0}, s{sT0}, {SCR2}")
        a(f"v_add_u32 v19, s{sT0}, v19")
        t = a(f"ds_write_b32 v19, v128")
        a(f"v_lshl_add_u32 v38, v{vG}, 5, s{sT0}")
        a.wait(t)
        for k in range(2):
            a(f"ds_read_b128 {V(132+4*k,4)}, v38 offset:{16*k}")
            a(f"ds_read_b128 {V(140+4*k,4)}, v38 offset:{128+16*k}")
        for u in range(n2):
            for k in range(0, 8, 2):
                a(f"v_pk_fma_f32 {V(z2+8*u+k,2)}, {V(z2+8*u+k,2)}, {V(140+k,2)}, {V(132+k,2)}")
        for u, (_, _, _, ni) in enumerate(tiles2):
            for k in range(4):
                a(f"v_cvt_pk_bf16_f32 v{148+4*u+k}, v{z2+8*u+2*k}, v{z2+8*u+2*k+1}")
            a(f"s_lshl_b32 s{sT0}, s{sN+ni}, 6")
            a(f"s_add_u32 s{sT0}, s{sT0}, s{sKB}")
            a(f"s_lshl_b32 s{sT0}, s{sT0}, 10")
            a(f"s_add_u32 s{sT0}, s{sT0}, {Z2_OFF}")
            a(f"buffer_store_dwordx4 {V(148+4*u,4)}, v{vL16}, {srd(sWS)}, s{sT0} offen sc1")
        a("s_waitcnt vmcnt(0)")
        a("s_barrier")
        def arrive():
            a(f"s_lshl_b32 s{sT0}, s{sC}, 7")
            a(f"s_add_u32 s{sT0}, s{sT0}, {F4_OFF}")
            a(f"v_mov_b32 v19, 1")
            a("s_mov_b64 exec, 1")
            a(f"buffer_atomic_add v19, off, {srd(sWS)}, s{sT0}")
            a("s_mov_b64 exec, -1")
        a.ifonly(f"s_cmp_lg_u32 s{sWV}, 0", arrive)
        self.ts("z2_pub")
        self.gelu(z1, 8*n1, ring, 32)
        a(f"v_lshlrev_b32 v38, 3, v{vLANE}")
        a(f"s_mul_i32 s{sT1}, s{sKB}, {2*56*512}")
        a(f"s_add_u32 s{sT1}, s{sT1}, {Z1_OFF}")
        for u, (_, _, _, ni) in enumerate(tiles1):
            for k in range(4):
                a(f"v_cvt_pk_bf16_f32 v{128+4*u+k}, v{z1+8*u+2*k}, v{z1+8*u+2*k+1}")
            a(f"s_lshl_b32 s{sT0}, s{sN+ni}, 9")
            a(f"s_add_u32 s{sT0}, s{sT0}, s{sT1}")
            a(f"s_add_u32 s{sT2}, s{sT0}, {56*512}")
            self.lst(f"buffer_store_dwordx2 {V(128+4*u,2)}, v38, {srd(sWS)}, s{sT0} offen\n"
                     f"buffer_store_dwordx2 {V(130+4*u,2)}, v38, {srd(sWS)}, s{sT2} offen")
        a(f"s_lshl_b32 s{sT0}, s{sKB}, 7")
        a(f"s_lshl_b32 s{sT1}, s{sP}, 2")
        a(f"s_add_u32 s{sT0}, s{sT0}, s{sT1}")
        a(f"s_add_u32 s{sT0}, s{sT0}, {F4B_OFF}")
        self.flag(sT0)
        self.ts("z1_pub")

    def p3(self):
        a = self.a
        rpg = self.dma_voffs('quad', 1024, 19, 38)
        a(f"s_lshl_b32 s{sT0}, s{sC}, 7")
        self.dma_image(sWOUT, 1024, rpg, sT0, R1F, 0, 12)
        self.twout = self.dma_image(sWOUT, 1024, rpg, sT0, R0, 0, 16, krow0=12*32)
        for r in range(8):
            tok = self.wsp_issue(r)
            t = self.wsp_read(r, tok)
            a.wait(t)
        self.ts("wsp_rdy")
        a(f"s_lshr_b32 s{sT0}, s{sMT}, 1")
        a(f"s_lshl_b32 s{sT0}, s{sT0}, 7")
        a(f"s_lshl_b32 s{sT1}, s{sC}, 3")
        a(f"s_add_u32 s{sT0}, s{sT0}, s{sT1}")
        a(f"s_add_u32 s{sT0}, s{sT0}, {F4B_OFF}")
        a(f"v_and_b32 v38, 1, v{vLANE}")
        a(f"v_lshl_add_u32 v38, v38, 2, s{sT0}")
        self.poll(38, 39, 1)
        vZ1 = 40; vB = 34
        a(f"v_lshlrev_b32 v38, 3, v{vLANE}")
        a(f"s_mul_i32 s{sT1}, s{sMT}, {56*512}")
        a(f"s_add_u32 s{sT1}, s{sT1}, {Z1_OFF}")
        for n in range(7):
            a(f"s_lshl_b32 s{sT0}, s{sN+n}, 9")
            a(f"s_add_u32 s{sT0}, s{sT0}, s{sT1}")
            a(f"buffer_load_dwordx2 {V(vZ1+2*n,2)}, v38, {srd(sWS)}, s{sT0} offen sc1")
        self.rowoff(38, 19)
        a(f"v_lshlrev_b32 v38, 1, v38")
        a(f"buffer_load_ushort v{vB}, v38, {srd(sBSP)}, 0 offen")
        def waitz2():
            a(f"s_lshl_b32 s{sT0}, s{sC}, 7")
            a(f"s_add_u32 s{sT0}, s{sT0}, {F4_OFF}")
            a(f"v_mov_b32 v38, s{sT0}")
            self.poll(38, 39, 31)
        a.ifonly(f"s_cmp_lg_u32 s{sWV}, 0", waitz2)
        self.barrier()
        self.ts("z2_rdy")
        a(f"v_lshlrev_b32 v{vB}, 16, v{vB}")
        ring = 128; acc = 64; vBA = 36; vW = 35; vR = 37; red = 96; vY = 112
        a(f"s_lshl_b32 s{sT0}, s{sWV}, 12")
        a(f"s_add_u32 s{sT0}, s{sT0}, {STG}")
        a(f"v_add_u32 v{vW}, s{sT0}, v{vL16}")
        a(f"s_lshl_b32 s{sT0}, s{sWV}, 10")
        a(f"s_add_u32 s{sT0}, s{sT0}, {STG}")
        a(f"v_add_u32 v{vR}, s{sT0}, v{vL16}")
        a(f"s_lshl_b32 s{sT3}, s{sWV}, 14")
        a(f"s_add_u32 s{sT3}, s{sT3}, {Z2_OFF}")
        a(f"s_mul_i32 s{sT2}, s{sMT}, {28*1024}")
        a(f"s_add_u32 s{sT2}, s{sT2}, {Y_OFF}")
        def setb(n):
            a(f"s_lshl_b32 s{sT0}, s{sN+n}, 16")
            a(f"s_add_u32 s{sT0}, s{sT0}, s{sT3}")
            a(f"v_add_u32 v{vBA}, s{sT0}, v{vL16}")
        def loadb(s):
            a(f"buffer_load_dwordx4 {V(ring+4*s,4)}, v{vBA}, {srd(sWS)}, s{sROT+(s>>1)} offen offset:{(s&1)*1024} sc1")
        def wr(n):
            for mt in range(4):
                a(f"ds_write_b128 v{vW}, {V(acc+16*(n&1)+4*mt,4)} offset:{(n&1)*16384+mt*1024}")
        def rd(n):
            for w in range(4):
                a(f"ds_read_b128 {V(red+4*w,4)}, v{vR} offset:{(n&1)*16384+w*4096}")
        def fin(n):
            for k in range(4):
                a(f"v_add_f32 v{red+k}, v{red+k}, v{red+4+k}")
                a(f"v_add_f32 v{red+8+k}, v{red+8+k}, v{red+12+k}")
            for k in range(4):
                a(f"v_add_f32 v{red+k}, v{red+k}, v{vB}")
            for h in range(2):
                a(f"v_lshlrev_b32 v{red+4+2*h}, 16, v{vZ1+2*n+h}")
                a(f"v_and_b32 v{red+5+2*h}, 0xffff0000, v{vZ1+2*n+h}")
            for k in range(4):
                a(f"v_add_f32 v{red+k}, v{red+k}, v{red+8+k}")
            for k in range(4):
                a(f"v_mul_f32 v{red+k}, v{red+k}, v{red+4+k}")
            half = 0 if n == 0 else (n - 1) & 1
            for h in range(2):
                a(f"v_cvt_pk_bf16_f32 v{vY+2*half+h}, v{red+2*h}, v{red+2*h+1}")
            if n == 0:
                a(f"s_lshr_b32 s{sT0}, s{sN}, 1")
                a(f"s_lshl_b32 s{sT0}, s{sT0}, 10")
                a(f"s_and_b32 s{sT1}, s{sN}, 1")
                a(f"s_lshl_b32 s{sT1}, s{sT1}, 3")
                a(f"s_add_u32 s{sT0}, s{sT0}, s{sT1}")
                a(f"s_add_u32 s{sT0}, s{sT0}, s{sT2}")
                self.lst(f"buffer_store_dwordx2 {V(vY,2)}, v{vL16}, {srd(sWS)}, s{sT0} offen")
            elif half:
                a(f"s_lshr_b32 s{sT0}, s{sN+n}, 1")
                a(f"s_lshl_b32 s{sT0}, s{sT0}, 10")
                a(f"s_add_u32 s{sT0}, s{sT0}, s{sT2}")
                self.lst(f"buffer_store_dwordx4 {V(vY,4)}, v{vL16}, {srd(sWS)}, s{sT0} offen")
        setb(0)
        for s in range(16):
            loadb(s)
        for n in range(7):
            if n < 6:
                setb(n + 1)
            for s in range(16):
                for mt in range(4):
                    d = V(acc+16*(n&1)+4*mt, 4)
                    a(f"v_mfma_f32_16x16x32_bf16 {d}, {V(ring+4*s,4)}, {A(16*s+4*mt,4)}, {d if s else 0}")
                if n < 6:
                    loadb(s)
                if n > 0:
                    if s == 1:
                        wr(n - 1)
                    if s == 5:
                        self.barrier()
                        rd(n - 1)
                    if s == 8:
                        fin(n - 1)
        wr(6)
        self.barrier()
        rd(6)
        fin(6)
        a(f"s_lshl_b32 s{sT0}, s{sMT}, 7")
        a(f"s_lshl_b32 s{sT1}, s{sC}, 2")
        a(f"s_add_u32 s{sT0}, s{sT0}, s{sT1}")
        a(f"s_add_u32 s{sT0}, s{sT0}, {F5_OFF}")
        self.flag(sT0)
        self.ts("y_pub")

    def p4(self):
        a = self.a
        vA = 128; acc = 64
        d2, kst = self.tr_addrs('quad', vTR, R0, 19, 38)
        for t in range(4):
            a(f"v_add_u32 v{40+t}, {R1F}, v{vTR+t}")
        a(f"s_lshl_b32 s{sT0}, s{sMT}, 7")
        a(f"s_add_u32 s{sT0}, s{sT0}, {F5_OFF}")
        a(f"v_and_b32 v38, 7, v{vLANE}")
        a(f"v_lshl_add_u32 v38, v38, 2, s{sT0}")
        self.poll(38, 39, 1)
        self.ts("y_rdy")
        a(f"s_mul_i32 s{sT0}, s{sMT}, {28*1024}")
        a(f"s_add_u32 s{sT0}, s{sT0}, {Y_OFF}")
        for ks in range(28):
            if ks and ks % 4 == 0:
                a(f"s_add_u32 s{sT0}, s{sT0}, 4096")
            a(f"buffer_load_dwordx4 {V(vA+4*ks,4)}, v{vL16}, {srd(sWS)}, s{sT0} offen offset:{(ks%4)*1024} sc1")
        for t in range(4):
            for h in range(2):
                a(f"v_lshlrev_b32 v{acc+4*t+2*h}, 16, v{vH+2*t+h}")
                a(f"v_and_b32 v{acc+4*t+2*h+1}, 0xffff0000, v{vH+2*t+h}")
        items = []
        for ks in range(28):
            for t in range(4):
                d = V(acc+4*t, 4)
                ad, off = (40 + t, ks*kst) if ks < 12 else (vTR + t, (ks-12)*kst)
                items.append((ad, off, d2, [f"v_mfma_f32_16x16x32_bf16 {d}, {{b}}, {V(vA+4*ks,4)}, {d}"]))
        self.gemm(items, 80, 12, 7, 4)
        self.rowoff(38, 19)
        a(f"v_lshlrev_b32 v38, 10, v38")
        a(f"v_lshl_add_u32 v38, v{vG}, 3, v38")
        a(f"s_lshl_b32 s{sT0}, s{sC}, 7")
        for t in range(4):
            for h in range(2):
                a(f"v_cvt_pk_bf16_f32 v{80+2*t+h}, v{acc+4*t+2*h}, v{acc+4*t+2*h+1}")
            a(f"buffer_store_dwordx2 {V(80+2*t,2)}, v38, {srd(sOUT)}, s{sT0} offen offset:{32*t}")
        self.ts("end")

    def build(self):
        a = self.a
        self.setup()
        for name, fn in (('p1', self.p1), ('p2a', self.p2a), ('p2b', self.p2b), ('p3', self.p3), ('p4', self.p4)):
            fn()
            if self.stop == name:
                break
        if self.prof:
            a(f"s_lshl_b32 s{sT0}, s2, 10")
            a(f"s_lshl_b32 s{sT1}, s{sWV}, 8")
            a(f"s_add_u32 s{sT0}, s{sT0}, s{sT1}")
            a(f"s_add_u32 s{sT0}, s{sT0}, {TS_OFF}")
            a(f"v_writelane_b32 v{vTS}, s{sSPIN}, 62")
            a(f"v_writelane_b32 v{vTS}, s{sMODE}, 63")
            a(f"v_lshlrev_b32 v19, 2, v{vLANE}")
            a(f"buffer_store_dword v{vTS}, v19, {srd(sWS)}, s{sT0} offen")
        if self.dbgts:
            def dump():
                a(f"v_readlane_b32 s{sT0}, v{vTS}, 0")
                a(f"v_subrev_u32 v{vTS}, s{sT0}, v{vTS}")
                a(f"v_cmp_lt_u32 vcc, 6, v{vLANE}")
                a(f"v_cndmask_b32_e64 v38, 1, 3, vcc")
                a(f"v_add_u32 v38, v38, v{vLANE}")
                a(f"v_lshlrev_b32 v38, 2, v38")
                a(f"s_mov_b64 exec, 0x1ffe")
                a(f"buffer_store_dword v{vTS}, v38, {srd(sDBG)}, 0 offen")
                a(f"s_mov_b64 exec, -1")
            a(f"s_lshl_b32 s{sT0}, s2, 2")
            a(f"s_add_u32 s{sT0}, s{sT0}, s{sWV}")
            a.ifonly(f"s_cmp_lg_u32 s{sT0}, {4*100}", dump)
        a("L_end:")
        a("s_endpgm")
        body = a.finish()
        ref = open('cdna_kernels/' + NAME + '.s.ref').read().split('\n')
        hdr = [l for l in ref if l.startswith(';') and '@launch' not in l]
        k = NAME + "_kernel"
        txt = "\n".join(hdr) + f"\n; @launch grid=(256,1,1) block=(256,1,1) lds={LDS_SIZE}\n"
        txt += '.amdgcn_target "amdgcn-amd-amdhsa--gfx950"\n.text\n'
        txt += f".globl {k}\n.p2align 8\n.type {k},@function\n{k}:\n" + body
        txt += f""".section .rodata,"a"
.p2align 6
.amdhsa_kernel {k}
  .amdhsa_next_free_vgpr 512
  .amdhsa_next_free_sgpr 102
  .amdhsa_accum_offset 256
  .amdhsa_group_segment_fixed_size 0
  .amdhsa_kernarg_size 96
  .amdhsa_user_sgpr_count 2
  .amdhsa_user_sgpr_kernarg_segment_ptr 1
  .amdhsa_system_sgpr_workgroup_id_x 1
.end_amdhsa_kernel
"""
        return txt


if __name__ == "__main__":
    import argparse, json
    ap = argparse.ArgumentParser()
    ap.add_argument('-o', default='cdna_kernels/' + NAME + '.s')
    ap.add_argument('--prof', action='store_true')
    ap.add_argument('--slow', action='store_true')
    ap.add_argument('--stop')
    ap.add_argument('--dbgts')
    ap.add_argument('--opt', default='')
    args = ap.parse_args()
    g = Gen(prof=args.prof, stop=args.stop, force_slow=args.slow, dbgts=args.dbgts.split(',') if args.dbgts else None, opt=[o for o in args.opt.split(',') if o])
    txt = g.build()
    if args.prof:
        txt = txt.replace("; @launch", "; tsnames " + ",".join(g.tsnames) + "\n; @launch", 1)
    open(args.o, 'w').write(txt)
    print("wrote", args.o, len(txt), "bytes,", txt.count("\n"), "lines")
```

```python
import sys, struct, math
sys.path.insert(0, 'work')
from asmlib import *

NAME = "sequential_preLN__linear_kernel_hedgehog__mixer_gmlp__prompt"

def f2u(x):
    return struct.unpack('<I', struct.pack('<f', x))[0]
def FH(x):
    return "0x%08x" % f2u(x)

MB = 1 << 20
O_OFF = 0
HN_OFF = 2 * MB
Z2_OFF = 4 * MB
Z1_OFF = 8 * MB
Y_OFF = 12 * MB
CLR_OFF = 16 * MB
KV_OFF = CLR_OFF
KVZ_OFF = CLR_OFF + MB
ST1_OFF = KVZ_OFF + 0x10000
ST2_OFF = ST1_OFF + 0x20000
F2_OFF = ST2_OFF + 0x40000
F3_OFF = F2_OFF + 0x2000
F4B_OFF = F3_OFF + 0x2000
F5_OFF = F4B_OFF + 0x2000
F4_OFF = F5_OFF + 0x4000
TS_OFF = 18 * MB
WS_SIZE = 19 * MB

R0 = 0
RK = 65536
RV = 98304
RQ = 131072
R1F = 65536
STG = 131072
SCR = 131072 - 20480
SCR2 = 131072 - 16384
LDS_SIZE = 163840

sX_, sWQKV, sWO, sWIN, sWSP, sWOUT, sOUT, sWS, sWPHI, sBSP, sDBG = 4, 8, 12, 16, 20, 24, 28, 32, 36, 40, 44
sXC, sJ, sRB, sP, sRB64, sC, sWV, sMODE, sSPIN, sKB, sMT = range(48, 59)
sT0, sT1, sT2, sT3, sT4 = range(59, 64)
sN = 64
sROT = 72
sL = 80
sC2 = 82
sONE = 84
sSO = 86
sSP = 87
sTS = 98

def srd(b): return S(b, 4)

vLANE, vL16, vTS, vI, vG = 0, 1, 2, 3, 4
vSTG = 5
vRDA = 9
vDMA = 11
vTR = 15
vT = 19
vST = 20
vH = 24


class Gen:
    def __init__(self, prof=False, stop=None, force_slow=False, dbgts=None, opt=(), padfrom=None):
        self.padfrom = padfrom
        self.dbgts = dbgts
        self.opt = set(opt)
        self.a = Asm()
        self.prof = prof
        self.stop = stop
        self.force_slow = force_slow
        self.nts = 0
        self.tsnames = []

    def ts(self, name):
        if self.padfrom == name:
            self.a("s_memrealtime s[96:97]")
            self.a("s_waitcnt lgkmcnt(0)")
        if not self.prof:
            return
        if self.dbgts and name not in self.dbgts:
            return
        a = self.a
        if name in self.tsnames:
            idx = self.tsnames.index(name)
        else:
            idx = len(self.tsnames); self.tsnames.append(name)
        a(f"s_memrealtime {S(sTS,2)}")
        a("s_waitcnt lgkmcnt(0)")
        a(f"v_writelane_b32 v{vTS}, s{sTS}, {idx}")

    def barrier(self):
        self.a("s_waitcnt lgkmcnt(0)")
        self.a("s_barrier")

    def lst(self, text):
        slow = "\n".join(l + " sc1" if l.strip().startswith(('buffer_store', 'global_store')) else l for l in text.strip().split('\n'))
        return self.a.both(f"s_cmp_lg_u32 s{sMODE}, 0", text, slow)

    def poll(self, vaddr, vtmp, expect):
        a = self.a
        lp = a.label('Lpoll'); ld = a.label('Lpd')
        a(f"{lp}:")
        a(f"buffer_load_dword v{vtmp}, v{vaddr}, {srd(sWS)}, 0 offen sc1")
        a(f"s_sub_u32 s{sSPIN}, s{sSPIN}, 1")
        a(f"s_cbranch_scc1 {ld}")
        a(f"v_cmp_ne_u32 vcc, {expect}, v{vtmp}")
        a(f"s_cbranch_vccnz {lp}")
        a(f"{ld}:")
        a(f"s_max_i32 s{sSPIN}, s{sSPIN}, 0")
        a("s_waitcnt vmcnt(0)")

    def flag(self, soff_expr_reg):
        a = self.a
        a("s_waitcnt vmcnt(0)")
        a(f"v_mov_b32 v{vT}, 1")
        a("s_mov_b64 exec, 1")
        self.lst(f"buffer_store_dword v{vT}, off, {srd(sWS)}, s{soff_expr_reg}")
        a("s_mov_b64 exec, -1")

    def dma_voffs(self, kind, rs, t0, t1):
        a = self.a
        if kind in ('pairN', 'pairP'):
            rows = 16
            a(f"v_lshrrev_b32 v{t0}, 2, v{vLANE}")
            if kind == 'pairN':
                a(f"v_lshrrev_b32 v{t1}, 5, v{vLANE}")
            else:
                a(f"v_and_b32 v{t1}, 1, v{vG}")
            a(f"v_lshlrev_b32 v{t1}, 1, v{t1}")
            a(f"v_xor_b32 v{t1}, v{t1}, v{vLANE}")
            a(f"v_and_b32 v{t1}, 3, v{t1}")
        elif kind == 'quad':
            rows = 8
            a(f"v_lshrrev_b32 v{t0}, 3, v{vLANE}")
            a(f"v_lshlrev_b32 v{t1}, 1, v{vG}")
            a(f"v_xor_b32 v{t1}, v{t1}, v{vLANE}")
            a(f"v_and_b32 v{t1}, 7, v{t1}")
        else:
            rows = 32
            a(f"v_lshrrev_b32 v{t0}, 1, v{vLANE}")
            a(f"v_and_b32 v{t1}, 1, v{vLANE}")
        a(f"v_mul_u32_u24 v{t0}, {rs}, v{t0}")
        a(f"v_lshl_add_u32 v{vDMA}, v{t1}, 4, v{t0}")
        for u in range(1, 4):
            a(f"v_add_u32 v{vDMA+u}, {u*(rows*rs-1024)}, v{vDMA}")
        return rows * 4

    def dma_group(self, vbase, srdb, flags=""):
        tok = None
        for u in range(4):
            off = f" offset:{u*1024}" if u else ""
            tok = self.a(f"buffer_load_dwordx4 v{vbase+u}, {srd(srdb)}, s{sSO} offen{off} {flags} lds")
        return tok

    def dma_image(self, srdb, rs, rows_per_group, col_sreg, ldsbase, g0, ngroups_total, krow0=0):
        a = self.a
        per = ngroups_total // 4
        a(f"s_mul_i32 s{sSO}, s{sWV}, {per*rows_per_group*rs}")
        a(f"s_add_u32 s{sSO}, s{sSO}, s{col_sreg}")
        if krow0:
            a(f"s_add_u32 s{sSO}, s{sSO}, {krow0*rs}")
        a(f"s_mul_i32 s{sT4}, s{sWV}, {per*4096}")
        a(f"s_add_u32 m0, s{sT4}, {ldsbase}")
        tok = None
        for g in range(per):
            if g:
                a(f"s_add_u32 s{sSO}, s{sSO}, {rows_per_group*rs}")
                a(f"s_add_u32 m0, m0, 4096")
            tok = self.dma_group(vDMA, srdb)
        return tok

    def tr_addrs(self, kind, dst, ldsbase, t0, t1):
        a = self.a
        a(f"v_bfe_u32 v{t0}, v{vLANE}, 2, 2")
        a(f"v_lshl_add_u32 v{t0}, v{vG}, {3 if kind == 'pairN' else 2}, v{t0}")
        a(f"v_and_b32 v{t1}, 3, v{vLANE}")
        a(f"v_lshlrev_b32 v{t1}, 3, v{t1}")
        if kind in ('pairN', 'pairP'):
            a(f"v_lshl_add_u32 v{t1}, v{t0}, 6, v{t1}")
            a(f"v_and_b32 v{t0}, 1, v{vG}")
            a(f"v_lshl_add_u32 v{t1}, v{t0}, 5, v{t1}")
            a(f"v_add_u32 v{dst}, {ldsbase}, v{t1}")
            a(f"v_xor_b32 v{dst+1}, 32, v{dst}")
            return (256 if kind == 'pairN' else 1024), 2048
        if kind == 'quad':
            a(f"v_lshl_add_u32 v{t1}, v{t0}, 7, v{t1}")
            a(f"v_bfe_u32 v{t0}, v{t0}, 1, 2")
            a(f"v_lshl_add_u32 v{t1}, v{t0}, 5, v{t1}")
            a(f"v_add_u32 v{dst}, {ldsbase}, v{t1}")
            for t in range(1, 4):
                a(f"v_xor_b32 v{dst+t}, {32*t}, v{dst}")
            return 2048, 4096
        a(f"v_lshl_add_u32 v{t1}, v{t0}, 5, v{t1}")
        a(f"v_add_u32 v{dst}, {ldsbase}, v{t1}")
        return 512, 1024

    def stg_voffs(self, rs, t0, t1):
        a = self.a
        a(f"v_lshrrev_b32 v{t0}, 5, v{vLANE}")
        a(f"v_bfe_u32 v{t1}, v{vLANE}, 3, 2")
        a(f"v_lshl_add_u32 v{t0}, v{t0}, 3, v{t1}")
        a(f"v_mul_u32_u24 v{t0}, {rs}, v{t0}")
        a(f"v_xor_b32 v{t1}, v{vG}, v{vLANE}")
        a(f"v_and_b32 v{t1}, 7, v{t1}")
        a(f"v_lshl_add_u32 v{vSTG}, v{t1}, 4, v{t0}")
        a(f"v_xor_b32 v{t1}, 64, v{vSTG}")
        a(f"v_add_u32 v{vSTG+1}, {16*rs-1024}, v{t1}")
        a(f"v_add_u32 v{vSTG+2}, {4*rs-2048}, v{vSTG}")
        a(f"v_add_u32 v{vSTG+3}, {20*rs-3072}, v{t1}")

    def stg_rdaddr(self, base, wavestride, t0):
        a = self.a
        a(f"v_lshrrev_b32 v{t0}, 1, v{vI}")
        a(f"v_xor_b32 v{t0}, v{t0}, v{vG}")
        a(f"v_lshlrev_b32 v{t0}, 4, v{t0}")
        a(f"v_lshl_add_u32 v{t0}, v{vI}, 7, v{t0}")
        a(f"s_mul_i32 s{sT4}, s{sWV}, {wavestride}")
        a(f"s_add_u32 s{sT4}, s{sT4}, {base}")
        a(f"v_add_u32 v{vRDA}, s{sT4}, v{t0}")
        a(f"v_xor_b32 v{vRDA+1}, 64, v{vRDA}")

    def gemm(self, items, ring, nring, la, group):
        a = self.a
        assert la + group <= nring + 0 or la < nring
        toks = {}
        def rd(idx, half):
            addr, off, d2, _ = items[idx]
            r = ring + 4 * (idx % nring) + 2 * half
            toks[idx] = a(f"ds_read_b64_tr_b16 {V(r,2)}, v{addr} offset:{off + d2*half}")
        for idx in range(min(la, len(items))):
            rd(idx, 0); rd(idx, 1)
        for idx, it in enumerate(items):
            if idx % group == 0:
                last = min(idx + group, len(items)) - 1
                assert last in toks, "look-ahead smaller than wait group"
                a.wait(toks[last])
            b = V(ring + 4 * (idx % nring), 4)
            pend = [0, 1] if idx + la < len(items) else []
            ms = it[3]
            for k, m in enumerate(ms):
                a(m.format(b=b))
                if pend:
                    rd(idx + la, pend.pop(0))
            while pend:
                rd(idx + la, pend.pop(0))

    def red4(self, op, r, dst):
        a = self.a
        a(f"v_permlane32_swap_b32 v{r[0]}, v{r[1]}")
        a(f"v_permlane32_swap_b32 v{r[2]}, v{r[3]}")
        a(f"{op} v{r[0]}, v{r[0]}, v{r[1]}")
        a(f"{op} v{r[2]}, v{r[2]}, v{r[3]}")
        a(f"v_permlane16_swap_b32 v{r[0]}, v{r[2]}")
        a(f"{op} v{dst}, v{r[0]}, v{r[2]}")

    def bc4(self, r):
        a = self.a
        a(f"v_mov_b32 v{r[2]}, v{r[0]}")
        a(f"v_permlane16_swap_b32 v{r[0]}, v{r[2]}")
        a(f"v_mov_b32 v{r[1]}, v{r[0]}")
        a(f"v_mov_b32 v{r[3]}, v{r[2]}")
        a(f"v_permlane32_swap_b32 v{r[0]}, v{r[1]}")
        a(f"v_permlane32_swap_b32 v{r[2]}, v{r[3]}")

    def setup(self):
        a = self.a
        a(f"s_cmp_ge_u32 s2, 256")
        a(f"s_cbranch_scc1 L_end")
        a(f"s_load_dwordx16 s[64:79], s[0:1], 0")
        a(f"s_load_dwordx8 s[80:87], s[0:1], 64")
        a(f"v_lshrrev_b32 v1, 6, v0")
        a(f"v_and_b32 v{vLANE}, 63, v0")
        a(f"v_readfirstlane_b32 s{sWV}, v1")
        a(f"v_lshlrev_b32 v{vL16}, 4, v{vLANE}")
        a(f"v_and_b32 v{vI}, 15, v{vLANE}")
        a(f"v_lshrrev_b32 v{vG}, 4, v{vLANE}")
        a(f"v_mov_b32 v{vTS}, 0")
        a(f"s_and_b32 s{sXC}, s2, 7")
        a(f"s_lshr_b32 s{sJ}, s2, 3")
        a(f"s_lshr_b32 s{sT0}, s{sJ}, 4")
        a(f"s_lshl_b32 s{sRB}, s{sXC}, 1")
        a(f"s_add_u32 s{sRB}, s{sRB}, s{sT0}")
        a(f"s_and_b32 s{sP}, s{sJ}, 15")
        a(f"s_and_b32 s{sT0}, s{sJ}, 1")
        a(f"s_lshl_b32 s{sRB64}, s{sRB}, 1")
        a(f"s_add_u32 s{sRB64}, s{sRB64}, s{sT0}")
        a(f"s_lshr_b32 s{sC}, s{sP}, 1")
        a(f"s_lshl_b32 s{sKB}, s{sRB}, 2")
        a(f"s_add_u32 s{sKB}, s{sKB}, s{sWV}")
        a(f"s_lshl_b32 s{sMT}, s{sRB64}, 2")
        a(f"s_add_u32 s{sMT}, s{sMT}, s{sWV}")
        a(f"s_mov_b32 s{sSPIN}, 0x80000")
        a(f"s_mov_b32 s{sMODE}, 1")
        a("s_waitcnt lgkmcnt(0)")
        for (b, p, n) in ((sX_, 0, 2048*512*2), (sWQKV, 1, 512*1536*2), (sWPHI, 2, 32*16*16*2), (sWO, 3, 512*512*2),
                          (sWIN, 5, 512*1792*2), (sWSP, 6, 2048*2048*2), (sBSP, 7, 2048*2), (sWOUT, 8, 896*512*2),
                          (sOUT, 9, 2048*512*2), (sDBG, 10, 256), (sWS, 11, WS_SIZE)):
            a(f"s_mov_b32 s{b}, s{64+2*p}")
            a(f"s_and_b32 s{b+1}, s{65+2*p}, 0xffff")
            a(f"s_mov_b32 s{b+2}, {n}")
            a(f"s_mov_b32 s{b+3}, 0x20000")
        self.ts("start")
        L = math.log2(math.e)
        k = math.sqrt(2.0 / math.pi)
        self.c1 = -2.0 * k * L
        self.c2 = self.c1 * 0.044715
        a(f"s_mov_b32 s{sL}, {FH(L)}")
        a(f"s_mov_b32 s{sL+1}, {FH(L)}")
        a(f"s_mov_b32 s{sC2}, {FH(self.c2)}")
        a(f"s_mov_b32 s{sC2+1}, {FH(self.c2)}")
        a(f"s_mov_b32 s{sONE}, 1.0")
        a(f"s_mov_b32 s{sONE+1}, 1.0")
        a(f"s_mul_i32 s{sT0}, s{sC}, 3")
        a(f"s_add_u32 s{sT0}, s{sT0}, 32")
        a(f"s_and_b32 s{sT1}, s{sC}, 1")
        a(f"s_add_u32 s{sN+1}, s{sT0}, s{sT1}")
        a(f"s_add_u32 s{sN+2}, s{sN+1}, 1")
        a(f"s_xor_b32 s{sT1}, s{sT1}, 1")
        a(f"s_lshl_b32 s{sT1}, s{sT1}, 1")
        a(f"s_add_u32 s{sN}, s{sT0}, s{sT1}")
        a(f"s_lshl_b32 s{sN+3}, s{sC}, 2")
        for t in range(1, 4):
            a(f"s_add_u32 s{sN+3+t}, s{sN+3}, {t}")
        for r in range(8):
            a(f"s_add_u32 s{sT0}, s{sC}, {r}")
            a(f"s_and_b32 s{sT0}, s{sT0}, 7")
            a(f"s_lshl_b32 s{sROT+r}, s{sT0}, 11")
        a(f"s_lshl_b32 s{sSP}, s{sRB64}, 18")
        a(f"s_lshl_b32 s{sT0}, s{sWV}, 10")
        a(f"s_add_u32 s{sSP}, s{sSP}, s{sT0}")

    def norm_tiles(self, acc, cs, dst):
        a = self.a
        for t in range(2):
            for m in range(2):
                r = acc + 8*t + 4*m
                for h in range(2):
                    a(f"v_pk_fma_f32 {V(r+2*h,2)}, {V(cs+4*t+2*h,2)}, {V(vST+2*m,2)}, {V(r+2*h,2)} op_sel_hi:[1,0,1]")
        for t in range(2):
            for m in range(2):
                r = acc + 8*t + 4*m
                for h in range(2):
                    a(f"v_pk_mul_f32 {V(r+2*h,2)}, {V(r+2*h,2)}, {V(vST+2*m,2)} op_sel:[0,1] op_sel_hi:[1,1]")
        for t in range(2):
            for m in range(2):
                r = acc + 8*t + 4*m
                for h in range(2):
                    a(f"v_cvt_pk_bf16_f32 v{dst+2*(2*t+m)+h}, v{r+2*h}, v{r+2*h+1}")

    def softmax(self, kb, wphi, p, ep, red):
        a = self.a
        for u in range(4):
            a(f"v_mfma_f32_16x16x16_bf16 {V(p+4*u,4)}, {V(wphi+2*(u>>1),2)}, {V(kb+2*u,2)}, 0")
        for u in range(4):
            r = p + 4*u
            a(f"v_max3_f32 v{red+2*u}, v{r}, v{r+1}, v{r+2}")
            a(f"v_max3_f32 v{red+2*u+1}, -v{r}, -v{r+1}, -v{r+2}")
        for u in range(4):
            r = p + 4*u
            a(f"v_max_f32 v{red+2*u}, v{red+2*u}, v{r+3}")
            a(f"v_max_f32_e64 v{red+2*u+1}, v{red+2*u+1}, -v{r+3}")
        g0 = [red, red+1, red+2, red+3]; g1 = [red+4, red+5, red+6, red+7]
        self.red4("v_max_f32", g0, g0[0]); self.red4("v_max_f32", g1, g1[0])
        a(f"v_mul_f32 v{g0[0]}, s{sL}, v{g0[0]}")
        a(f"v_mul_f32 v{g1[0]}, s{sL}, v{g1[0]}")
        self.bc4(g0); self.bc4(g1)
        for u in range(4):
            for h in range(2):
                a(f"v_pk_fma_f32 {V(ep+4*u+2*h,2)}, {V(p+4*u+2*h,2)}, {S(sL,2)}, {V(red+2*u,2)} op_sel_hi:[1,1,0] neg_lo:[0,0,1] neg_hi:[0,0,1]")
            for h in range(2):
                a(f"v_pk_fma_f32 {V(p+4*u+2*h,2)}, {V(p+4*u+2*h,2)}, {S(sL,2)}, {V(red+2*u,2)} op_sel:[0,0,1] op_sel_hi:[1,1,1] neg_lo:[1,0,1] neg_hi:[1,0,1]")
        for k in range(16):
            a(f"v_exp_f32 v{ep+k}, v{ep+k}")
            a(f"v_exp_f32 v{p+k}, v{p+k}")
        for u in range(4):
            a(f"v_add_f32 v{red+2*u}, v{ep+4*u}, v{ep+4*u+1}")
            a(f"v_add_f32 v{red+2*u+1}, v{p+4*u}, v{p+4*u+1}")
        for k in (2, 3):
            for u in range(4):
                a(f"v_add_f32 v{red+2*u}, v{red+2*u}, v{ep+4*u+k}")
                a(f"v_add_f32 v{red+2*u+1}, v{red+2*u+1}, v{p+4*u+k}")
        self.red4("v_add_f32", g0, g0[0]); self.red4("v_add_f32", g1, g1[0])
        a(f"v_rcp_f32 v{g0[0]}, v{g0[0]}")
        a(f"v_rcp_f32 v{g1[0]}, v{g1[0]}")
        self.bc4(g0); self.bc4(g1)
        for u in range(4):
            for h in range(2):
                a(f"v_pk_mul_f32 {V(ep+4*u+2*h,2)}, {V(ep+4*u+2*h,2)}, {V(red+2*u,2)} op_sel_hi:[1,0]")
                a(f"v_pk_mul_f32 {V(p+4*u+2*h,2)}, {V(p+4*u+2*h,2)}, {V(red+2*u,2)} op_sel:[0,1] op_sel_hi:[1,1]")

    def p1(self):
        a = self.a
        vA = 128; vCS = 40; vONES = 24; vID = 32; vWP = 34
        for k in range(4):
            a(f"v_mov_b32 v{28+k}, -1")
        a(f"s_lshl_b32 s{sT0}, s2, 13")
        a(f"s_lshl_b32 s{sT1}, s{sWV}, 11")
        a(f"s_add_u32 s{sT0}, s{sT0}, s{sT1}")
        a(f"s_add_u32 s{sT0}, s{sT0}, {CLR_OFF}")
        a(f"buffer_store_dwordx4 {V(28,4)}, v{vL16}, {srd(sWS)}, s{sT0} offen sc1")
        a(f"buffer_store_dwordx4 {V(28,4)}, v{vL16}, {srd(sWS)}, s{sT0} offen offset:1024 sc1")
        rpg = self.dma_voffs('pairN', 3072, 19, 20)
        a(f"s_lshl_b32 s{sT0}, s{sP}, 6")
        a(f"s_add_u32 s{sT1}, s{sT0}, 1024")
        self.dma_image(sWQKV, 3072, rpg, sT1, RK, 0, 8)
        a(f"s_add_u32 s{sT1}, s{sT0}, 2048")
        tkv = self.dma_image(sWQKV, 3072, rpg, sT1, RV, 0, 8)
        self.stg_voffs(1024, 19, 20)
        def xround(r):
            a(f"s_lshl_b32 s{sSO}, s{sKB}, 15")
            if r:
                a(f"s_add_u32 s{sSO}, s{sSO}, {512*r}")
            a(f"s_lshl_b32 m0, s{sWV}, 14")
            toks = []
            for b in range(4):
                if b:
                    a(f"s_add_u32 s{sSO}, s{sSO}, 128")
                    a(f"s_add_u32 m0, m0, 4096")
                toks.append(self.dma_group(vSTG, sX_))
            return toks
        tx0 = xround(0)
        a(f"v_lshlrev_b32 v19, 7, v{vG}")
        a(f"v_lshl_add_u32 v19, v{vI}, 1, v19")
        a(f"s_lshl_b32 s{sT1}, s{sP}, 10")
        for t in range(2):
            for j in range(4):
                a(f"buffer_load_ushort v{56+4*t+j}, v19, {srd(sWPHI)}, s{sT1} offen offset:{512*t+32*j}")
        for k in range(4):
            a(f"v_mov_b32 v{vONES+k}, 0x3f803f80")
        a(f"v_lshlrev_b32 v19, 2, v{vG}")
        a(f"v_sub_u32 v19, v{vI}, v19")
        a(f"v_mov_b32 v20, 0x3f80")
        a(f"v_mov_b32 v21, 0x3f800000")
        for h in range(2):
            a(f"v_cmp_eq_u32 vcc, {2*h}, v19")
            a(f"v_cndmask_b32 v{vID+h}, 0, v20, vcc")
            a(f"v_cmp_eq_u32 vcc, {2*h+1}, v19")
            a(f"v_cndmask_b32 v{vID+h}, v{vID+h}, v21, vcc")
        d2, kst = self.tr_addrs('pairN', vTR, RK, 19, 20)
        self.stg_rdaddr(R0, 16384, 19)
        a.wait(tkv)
        a("s_barrier")
        self.ts("w_ready")
        def arrive():
            a(f"s_getreg_b32 s{sT0}, hwreg(HW_REG_XCC_ID)")
            a(f"s_and_b32 s{sT0}, s{sT0}, 7")
            a(f"s_lshl_b32 s{sT0}, s{sT0}, 3")
            a(f"s_mov_b64 {S(sT1,2)}, 1")
            a(f"s_lshl_b64 {S(sT1,2)}, {S(sT1,2)}, s{sT0}")
            a(f"v_mov_b32 v20, s{sT1}")
            a(f"v_mov_b32 v21, s{sT2}")
            a(f"s_lshl_b32 s{sT0}, s{sXC}, 5")
            a("s_mov_b64 exec, 1")
            a(f"buffer_atomic_add_x2 {V(20,2)}, off, {srd(sDBG)}, s{sT0}")
            a("s_mov_b64 exec, -1")
        assert sT1 % 2 == 0
        a.ifonly(f"s_cmp_lg_u32 s{sWV}, 0", arrive)
        items = []
        for ks in range(16):
            for u in range(4):
                c = V(vCS+4*u, 4) if ks else "0"
                items.append((vTR + (u & 1), ks*kst + (u >> 1)*32768, d2,
                              [f"v_mfma_f32_16x16x32_bf16 {V(vCS+4*u,4)}, {{b}}, {V(vONES,4)}, {c}"]))
        self.gemm(items, 96, 8, 6, 2)
        for t in range(2):
            for h in range(2):
                a(f"v_lshl_or_b32 v{vWP+2*t+h}, v{56+4*t+2*h+1}, 16, v{56+4*t+2*h}")
        def xread(r, toks):
            for b in range(4):
                a.wait(toks[b])
                for k2 in range(2):
                    for m in range(2):
                        ks = 8*r + 2*b + k2
                        a(f"ds_read_b128 {V(vA+8*ks+4*m,4)}, v{vRDA+k2} offset:{b*4096+m*2048}")
        xread(0, tx0)
        a("s_waitcnt lgkmcnt(0)")
        tx1 = xround(1)
        a(f"s_lshl_b32 s{sT0}, s{sP}, 6")
        tq = self.dma_image(sWQKV, 3072, rpg, sT0, RQ, 0, 8)
        for k in range(4):
            a(f"v_mov_b32 v{28+k}, 0")
        def stats(r):
            for ks in range(8*r, 8*r+8):
                for k in range(4):
                    for m in range(2):
                        x = vA + 8*ks + 4*m + k
                        a(f"v_dot2c_f32_bf16 v{28+2*m}, v{x}, v{vONES}")
                        a(f"v_dot2c_f32_bf16 v{29+2*m}, v{x}, v{x}")
        def kvgemm(r):
            items = []
            for ks in range(8*r, 8*r+8):
                for u in range(4):
                    ms = []
                    for m in range(2):
                        d = V(64+8*u+4*m, 4)
                        ms.append(f"v_mfma_f32_16x16x32_bf16 {d}, {{b}}, {V(vA+8*ks+4*m,4)}, {d if ks else 0}")
                    items.append((vTR + (u & 1), ks*kst + (u >> 1)*32768, d2, ms))
            self.gemm(items, 96, 8, 5, 2)
        stats(0)
        kvgemm(0)
        self.ts("kv_half")
        xread(1, tx1)
        a("s_waitcnt lgkmcnt(0)")
        rpg = self.dma_voffs('quad', 1024, 19, 20)
        a(f"s_lshl_b32 s{sT0}, s{sC}, 7")
        self.two = self.dma_image(sWO, 1024, rpg, sT0, R0, 0, 16)
        stats(1)
        kvgemm(1)
        self.ts("kv_gemm")
        g = [28, 29, 30, 31]
        self.red4("v_add_f32", g, 28)
        self.bc4(g)
        for m in range(2):
            a(f"v_mul_f32 v{vST+2*m}, {FH(-1.0/512)}, v{28+2*m}")
            a(f"v_mul_f32 v{29+2*m}, {FH(1.0/512)}, v{29+2*m}")
        for m in range(2):
            a(f"v_fma_f32 v{29+2*m}, -v{vST+2*m}, v{vST+2*m}, v{29+2*m}")
        for m in range(2):
            a(f"v_max_f32 v{29+2*m}, 0, v{29+2*m}")
        for m in range(2):
            a(f"v_add_f32 v{29+2*m}, {FH(1e-5)}, v{29+2*m}")
        for m in range(2):
            a(f"v_rsq_f32 v{vST+2*m+1}, v{29+2*m}")
        self.norm_tiles(80, vCS+8, 96)
        for u in range(4):
            a(f"v_mfma_f32_16x16x16_bf16 {V(80+4*u,4)}, {V(96+2*u,2)}, {V(vID,2)}, 0")
        self.norm_tiles(64, vCS, 112)
        for u in range(4):
            for h in range(2):
                a(f"v_cvt_pk_bf16_f32 v{104+2*u+h}, v{80+4*u+2*h}, v{80+4*u+2*h+1}")
        self.softmax(112, vWP, 64, 80, 120)
        for base in (80, 64):
            for u in range(4):
                for h in range(2):
                    a(f"v_cvt_pk_bf16_f32 v{base+4*u+h}, v{base+4*u+2*h}, v{base+4*u+2*h+1}")
        for u in range(4):
            a(f"v_mfma_f32_16x16x16_bf16 {V(40+4*u,4)}, {V(80+4*u,2)}, {V(vID,2)}, 0")
            a(f"v_mfma_f32_16x16x16_bf16 {V(112+4*u,4)}, {V(64+4*u,2)}, {V(vID,2)}, 0")
        for sg, base in ((0, 40), (1, 112)):
            for t in range(2):
                for m in range(2):
                    for h in range(2):
                        r = base + 4*(2*t+m) + 2*h
                        a(f"v_cvt_pk_bf16_f32 v{64+4*(2*t+sg)+2*m+h}, v{r}, v{r+1}")
        for qd in range(4):
            a(f"v_mfma_f32_16x16x32_bf16 {V(80+4*qd,4)}, {V(64+4*qd,4)}, {V(104+4*(qd>>1),4)}, 0")
            a(f"v_mfma_f32_16x16x32_bf16 {V(112+4*qd,4)}, {V(64+4*qd,4)}, {V(vONES,4)}, 0")
        self.ts("k_epi")
        def check():
            lp = a.label('Linit'); ld = a.label('Linitd')
            a(f"v_and_b32 v19, 7, v{vLANE}")
            a(f"v_lshlrev_b32 v19, 5, v19")
            a(f"{lp}:")
            a(f"buffer_load_dwordx2 {V(40,2)}, v19, {srd(sDBG)}, 0 offen sc1")
            a(f"s_sub_u32 s{sSPIN}, s{sSPIN}, 1")
            a(f"s_cbranch_scc1 {ld}")
            a(f"v_sad_u8 v42, v40, 0, 0")
            a(f"v_sad_u8 v42, v41, 0, v42")
            a(f"v_cmp_gt_u32 vcc, 32, v42")
            a(f"s_cbranch_vccnz {lp}")
            a(f"{ld}:")
            a(f"s_max_i32 s{sSPIN}, s{sSPIN}, 0")
            a("s_waitcnt vmcnt(0)")
            a(f"v_or_b32 v40, v40, v41")
            a(f"v_and_b32 v40, 0x20202020, v40")
            a(f"v_readlane_b32 s{sT0}, v40, s{sXC}")
            a(f"s_cmp_eq_u32 s{sT0}, 0")
            a(f"s_cselect_b32 s{sMODE}, 1, 0")
        a.ifonly(f"s_cmp_lg_u32 s{sWV}, 0", check)
        a.wait(tq)
        self.barrier()
        a(f"s_lshl_b32 s{sT0}, s{sWV}, 12")
        a(f"s_add_u32 s{sT0}, s{sT0}, {SCR}")
        a(f"v_add_u32 v19, s{sT0}, v{vL16}")
        for qd in range(4):
            a(f"ds_write_b128 v19, {V(80+4*qd,4)} offset:{qd*1024}")
        a(f"s_lshl_b32 s{sT0}, s{sWV}, 8")
        a(f"s_add_u32 s{sT0}, s{sT0}, {SCR+16384}")
        a(f"v_lshl_add_u32 v38, v{vG}, 4, s{sT0}")
        a(f"s_mov_b32 exec_lo, 0x00010001")
        a(f"s_mov_b32 exec_hi, 0x00010001")
        for qd in range(4):
            a(f"ds_write_b128 v38, {V(112+4*qd,4)} offset:{qd*64}")
        a("s_mov_b64 exec, -1")
        a(f"v_mov_b32 v38, {SCR+17408}")
        a(f"v_mov_b32 v39, s{sMODE}")
        a.ifonly(f"s_cmp_lg_u32 s{sWV}, 0", lambda: a(f"ds_write_b32 v38, v39"))
        self.barrier()
        a(f"ds_read_b32 v39, v38")
        a(f"s_lshl_b32 s{sT0}, s{sWV}, 10")
        a(f"s_add_u32 s{sT0}, s{sT0}, {SCR}")
        a(f"v_add_u32 v19, s{sT0}, v{vL16}")
        for w in range(4):
            a(f"ds_read_b128 {V(80+4*w,4)}, v19 offset:{w*4096}")
        a(f"s_lshl_b32 s{sT0}, s{sWV}, 6")
        a(f"s_add_u32 s{sT0}, s{sT0}, {SCR+16384}")
        a(f"v_lshl_add_u32 v38, v{vG}, 4, s{sT0}")
        for w in range(4):
            a(f"ds_read_b128 {V(112+4*w,4)}, v38 offset:{w*256}")
        a(f"v_readfirstlane_b32 s{sMODE}, v39")
        if self.force_slow:
            a(f"s_mov_b32 s{sMODE}, 1")
        for base in (80, 112):
            for h in range(2):
                a(f"v_pk_add_f32 {V(base+2*h,2)}, {V(base+2*h,2)}, {V(base+4+2*h,2)}")
                a(f"v_pk_add_f32 {V(base+8+2*h,2)}, {V(base+8+2*h,2)}, {V(base+12+2*h,2)}")
            for h in range(2):
                a(f"v_pk_add_f32 {V(base+2*h,2)}, {V(base+2*h,2)}, {V(base+8+2*h,2)}")
        a(f"s_lshl_b32 s{sT0}, s{sP}, 2")
        a(f"s_add_u32 s{sT0}, s{sT0}, s{sWV}")
        a(f"s_lshl_b32 s{sT0}, s{sT0}, 4")
        a(f"s_add_u32 s{sT1}, s{sT0}, s{sRB}")
        a(f"s_lshl_b32 s{sT2}, s{sT1}, 10")
        a(f"s_add_u32 s{sT2}, s{sT2}, {KV_OFF}")
        a(f"buffer_store_dwordx4 {V(80,4)}, v{vL16}, {srd(sWS)}, s{sT2} offen sc1")
        a(f"s_lshl_b32 s{sT2}, s{sT1}, 6")
        a(f"s_add_u32 s{sT2}, s{sT2}, {KVZ_OFF}")
        a(f"v_lshlrev_b32 v38, 4, v{vG}")
        a(f"s_mov_b32 exec_lo, 0x00010001")
        a(f"s_mov_b32 exec_hi, 0x00010001")
        a(f"buffer_store_dwordx4 {V(112,4)}, v38, {srd(sWS)}, s{sT2} offen sc1")
        a("s_mov_b64 exec, -1")
        self.ts("kv_pub")
        a(f"v_add_u32 v{vTR}, {RQ-RK}, v{vTR}")
        a(f"v_add_u32 v{vTR+1}, {RQ-RK}, v{vTR+1}")
        items = []
        for ks in range(16):
            for t in range(2):
                ms = []
                for m in range(2):
                    d = V(64+8*t+4*m, 4)
                    ms.append(f"v_mfma_f32_16x16x32_bf16 {d}, {{b}}, {V(vA+8*ks+4*m,4)}, {d if ks else 0}")
                d = V(vCS+4*t, 4)
                ms.append(f"v_mfma_f32_16x16x32_bf16 {d}, {{b}}, {V(vONES,4)}, {d if ks else 0}")
                items.append((vTR + t, ks*kst, d2, ms))
        self.gemm(items, 84, 6, 4, 2)
        self.ts("q_gemm")
        self.norm_tiles(64, vCS, 112)
        self.softmax(112, vWP, 64, 80, 120)
        for u in range(4):
            for h in range(2):
                a(f"v_cvt_pk_bf16_f32 v{96+4*u+h}, v{80+4*u+2*h}, v{80+4*u+2*h+1}")
                a(f"v_cvt_pk_bf16_f32 v{96+4*u+2+h}, v{64+4*u+2*h}, v{64+4*u+2*h+1}")
        self.ts("q_epi")
        lp = a.label('Lkv'); ld = a.label('Lkvd')
        a(f"v_lshlrev_b32 v38, 4, v{vG}")
        a(f"v_lshl_add_u32 v38, v{vI}, 6, v38")
        a(f"s_lshl_b32 s{sT1}, s{sT0}, 6")
        a(f"s_add_u32 s{sT1}, s{sT1}, {KVZ_OFF}")
        a(f"s_lshl_b32 s{sT0}, s{sT0}, 10")
        a(f"s_add_u32 s{sT0}, s{sT0}, {KV_OFF}")
        a(f"{lp}:")
        a(f"buffer_load_dwordx4 {V(192,4)}, v38, {srd(sWS)}, s{sT1} offen sc1")
        a(f"s_mov_b32 s{sT2}, s{sT0}")
        for rb in range(16):
            if rb and rb % 4 == 0:
                a(f"s_add_u32 s{sT2}, s{sT2}, 4096")
            a(f"buffer_load_dwordx4 {V(128+4*rb,4)}, v{vL16}, {srd(sWS)}, s{sT2} offen offset:{(rb%4)*1024} sc1")
        a(f"s_sub_u32 s{sSPIN}, s{sSPIN}, 16")
        a(f"s_cbranch_scc1 {ld}")
        a(f"v_max_u32 v39, v192, v193")
        a(f"v_max3_u32 v39, v39, v194, v195")
        for k in range(32):
            a(f"v_max3_u32 v39, v39, v{128+2*k}, v{129+2*k}")
        a(f"v_cmp_eq_u32 vcc, -1, v39")
        a(f"s_cbranch_vccnz {lp}")
        a(f"{ld}:")
        a(f"s_max_i32 s{sSPIN}, s{sSPIN}, 0")
        a("s_waitcnt vmcnt(0)")
        n = 16
        while n > 1:
            n //= 2
            for k in range(n):
                for h in range(2):
                    a(f"v_pk_add_f32 {V(128+4*k+2*h,2)}, {V(128+4*k+2*h,2)}, {V(128+4*(k+n)+2*h,2)}")
        for rot in (8, 4, 2, 1):
            for k in range(4):
                a(f"v_add_f32_dpp v{192+k}, v{192+k}, v{192+k} row_ror:{rot} row_mask:0xf bank_mask:0xf")
        for h in range(2):
            a(f"v_cvt_pk_bf16_f32 v{128+h}, v{128+2*h}, v{129+2*h}")
        for h in range(2):
            a(f"v_cvt_pk_bf16_f32 v{130+h}, v{192+2*h}, v{193+2*h}")
        self.ts("kv_gath")
        a(f"s_lshl_b32 s{sT0}, s{sWV}, 10")
        a(f"s_add_u32 s{sT0}, s{sT0}, {RK}")
        a(f"v_add_u32 v19, s{sT0}, v{vL16}")
        a(f"ds_write_b128 v19, {V(128,4)}")
        self.barrier()
        a(f"v_add_u32 v19, {RK}, v{vL16}")
        for t in range(2):
            for sg in range(2):
                a(f"ds_read_b64 {V(132+4*t+2*sg,2)}, v19 offset:{(2*t+sg)*1024}")
                a(f"ds_read_b64 {V(140+4*t+2*sg,2)}, v19 offset:{(2*t+sg)*1024+8}")
        for u in range(4):
            a(f"v_mfma_f32_16x16x32_bf16 {V(80+4*u,4)}, {V(140+4*(u>>1),4)}, {V(96+4*u,4)}, 0")
        for u in range(4):
            a(f"v_mfma_f32_16x16x32_bf16 {V(64+4*u,4)}, {V(132+4*(u>>1),4)}, {V(96+4*u,4)}, 0")
        for u in range(4):
            a(f"v_add_f32 v{80+4*u}, {FH(1e-6)}, v{80+4*u}")
        for u in range(4):
            a(f"v_rcp_f32 v{80+4*u}, v{80+4*u}")
        for u in range(4):
            for h in range(2):
                a(f"v_pk_mul_f32 {V(64+4*u+2*h,2)}, {V(64+4*u+2*h,2)}, {V(80+4*u,2)} op_sel_hi:[1,0]")
        for t in range(2):
            for m in range(2):
                for h in range(2):
                    r = 64 + 4*(2*t+m) + 2*h
                    a(f"v_cvt_pk_bf16_f32 v{112+4*m+2*t+h}, v{r}, v{r+1}")
        a(f"s_lshl_b32 s{sT0}, s{sKB}, 15")
        a(f"s_lshl_b32 s{sT1}, s{sP}, 10")
        a(f"s_add_u32 s{sT0}, s{sT0}, s{sT1}")
        a(f"s_add_u32 s{sT1}, s{sT0}, {O_OFF+16384}")
        if O_OFF:
            a(f"s_add_u32 s{sT0}, s{sT0}, {O_OFF}")
        self.lst(f"buffer_store_dwordx4 {V(112,4)}, v{vL16}, {srd(sWS)}, s{sT0} offen\n"
                 f"buffer_store_dwordx4 {V(116,4)}, v{vL16}, {srd(sWS)}, s{sT1} offen")
        a(f"s_lshl_b32 s{sT0}, s{sKB}, 7")
        a(f"s_lshl_b32 s{sT1}, s{sP}, 2")
        a(f"s_add_u32 s{sT0}, s{sT0}, s{sT1}")
        a(f"s_add_u32 s{sT0}, s{sT0}, {F2_OFF}")
        self.flag(sT0)
        self.ts("o_pub")

    def win_part(self, first):
        a = self.a
        base = R1F if first else R0
        colb = 1792 if first else 0
        def quad():
            rpg = self.dma_voffs('quad', 3584, 19, 38)
            a(f"s_lshl_b32 s{sT0}, s{sN+3}, 5")
            if colb:
                a(f"s_add_u32 s{sT0}, s{sT0}, {colb}")
            return self.dma_image(sWIN, 3584, rpg, sT0, base, 0, 16)
        def triple():
            rpg = self.dma_voffs('pairP', 3584, 19, 38)
            a(f"s_lshl_b32 s{sT0}, s{sN+1}, 5")
            if colb:
                a(f"s_add_u32 s{sT0}, s{sT0}, {colb}")
            self.dma_image(sWIN, 3584, rpg, sT0, base, 0, 8)
            rpg = self.dma_voffs('single', 3584, 19, 38)
            a(f"s_lshl_b32 s{sT0}, s{sN}, 5")
            if colb:
                a(f"s_add_u32 s{sT0}, s{sT0}, {colb}")
            return self.dma_image(sWIN, 3584, rpg, sT0, base + 32768, 0, 4)
        if first:
            return a.ifelse(f"s_bitcmp1_b32 s{sP}, 0", quad, triple)
        return a.ifelse(f"s_bitcmp1_b32 s{sP}, 0", triple, quad)

    def wsp_setup(self):
        self.stg_voffs(4096, 19, 38)
        self.stg_rdaddr(STG, 8192, 19)

    def wsp_issue(self, r):
        a = self.a
        a(f"s_lshr_b32 s{sSO}, s{sROT+r}, 4")
        a(f"s_add_u32 s{sSO}, s{sSO}, s{sSP}")
        a(f"s_lshl_b32 s{sT4}, s{sWV}, 13")
        a(f"s_add_u32 m0, s{sT4}, {STG}")
        self.dma_group(vSTG, sWSP)
        a(f"s_add_u32 s{sSO}, s{sSO}, {32*4096}")
        a(f"s_add_u32 m0, m0, 4096")
        return self.dma_group(vSTG, sWSP)

    def wsp_read(self, r, tok):
        a = self.a
        a.wait(tok)
        t = None
        for k2 in range(2):
            for mt in range(4):
                t = a(f"ds_read_b128 {A(32*r+16*k2+4*mt,4)}, v{vRDA+k2} offset:{(mt>>1)*4096+(mt&1)*2048}")
        return t

    def rowoff(self, dst, t0):
        a = self.a
        a(f"v_lshrrev_b32 v{t0}, 2, v{vI}")
        a(f"v_lshlrev_b32 v{t0}, 3, v{t0}")
        a(f"v_and_or_b32 v{t0}, v{vI}, 3, v{t0}")
        a(f"s_lshr_b32 s{sT3}, s{sMT}, 1")
        a(f"s_lshl_b32 s{sT3}, s{sT3}, 5")
        a(f"s_and_b32 s{sT4}, s{sMT}, 1")
        a(f"s_lshl_b32 s{sT4}, s{sT4}, 2")
        a(f"s_add_u32 s{sT3}, s{sT3}, s{sT4}")
        a(f"v_add_u32 v{dst}, s{sT3}, v{t0}")

    def p2a(self):
        a = self.a
        vA = 128; acc = 64
        self.barrier()
        self.twin1 = self.win_part(True)
        self.wsp_setup()
        self.rowoff(38, 19)
        a(f"v_lshlrev_b32 v38, 10, v38")
        a(f"v_lshl_add_u32 v38, v{vG}, 3, v38")
        a(f"s_lshl_b32 s{sT0}, s{sC}, 7")
        for t in range(4):
            a(f"buffer_load_dwordx2 {V(vH+2*t,2)}, v38, {srd(sX_)}, s{sT0} offen offset:{32*t}")
        d2, kst = self.tr_addrs('quad', vTR, R0, 19, 38)
        a(f"s_lshr_b32 s{sT0}, s{sMT}, 1")
        a(f"s_lshl_b32 s{sT0}, s{sT0}, 7")
        a(f"s_add_u32 s{sT0}, s{sT0}, {F2_OFF}")
        a(f"v_lshl_add_u32 v38, v{vI}, 2, s{sT0}")
        self.poll(38, 39, 1)
        self.ts("o_rdy")
        a(f"s_lshl_b32 s{sT0}, s{sMT}, 14")
        if O_OFF:
            a(f"s_add_u32 s{sT0}, s{sT0}, {O_OFF}")
        for ks in range(16):
            if ks and ks % 4 == 0:
                a(f"s_add_u32 s{sT0}, s{sT0}, 4096")
            a(f"buffer_load_dwordx4 {V(vA+4*ks,4)}, v{vL16}, {srd(sWS)}, s{sT0} offen offset:{(ks%4)*1024} sc1")
        items = []
        for ks in range(16):
            for t in range(4):
                d = V(acc+4*t, 4)
                items.append((vTR + t, ks*kst, d2, [f"v_mfma_f32_16x16x32_bf16 {d}, {{b}}, {V(vA+4*ks,4)}, {d if ks else 0}"]))
        self.gemm(items, 192, 12, 7, 4)
        self.ts("h_gemm")
        for t in range(4):
            for h in range(2):
                a(f"v_lshlrev_b32 v{80+4*t+2*h}, 16, v{vH+2*t+h}")
                a(f"v_and_b32 v{81+4*t+2*h}, 0xffff0000, v{vH+2*t+h}")
        for k in range(8):
            a(f"v_pk_add_f32 {V(acc+2*k,2)}, {V(acc+2*k,2)}, {V(80+2*k,2)}")
        a(f"v_pk_add_f32 {V(80,2)}, {V(acc,2)}, {V(acc+2,2)}")
        a(f"v_pk_mul_f32 {V(82,2)}, {V(acc,2)}, {V(acc,2)}")
        a(f"v_pk_fma_f32 {V(82,2)}, {V(acc+2,2)}, {V(acc+2,2)}, {V(82,2)}")
        for k in range(2, 8):
            a(f"v_pk_add_f32 {V(80,2)}, {V(80,2)}, {V(acc+2*k,2)}")
            a(f"v_pk_fma_f32 {V(82,2)}, {V(acc+2*k,2)}, {V(acc+2*k,2)}, {V(82,2)}")
        a(f"v_add_f32 v80, v80, v81")
        a(f"v_add_f32 v81, v82, v83")
        self.allred2(80, 81, 82)
        a(f"v_max_f32 v81, 0, v81")
        a(f"s_lshl_b32 s{sT0}, s{sMT}, 10")
        a(f"s_add_u32 s{sT0}, s{sT0}, {ST1_OFF}")
        a(f"s_lshl_b32 s{sT1}, s{sC}, 3")
        a(f"s_add_u32 s{sT1}, s{sT1}, s{sT0}")
        a(f"v_lshlrev_b32 v38, 6, v{vI}")
        a(f"s_mov_b64 exec, 0xffff")
        self.lst(f"buffer_store_dwordx2 {V(80,2)}, v38, {srd(sWS)}, s{sT1} offen")
        a(f"s_mov_b64 exec, -1")
        a(f"v_lshl_add_u32 v38, v{vG}, 4, v38")
        for k in range(8):
            a(f"v_cvt_pk_bf16_f32 v{vH+k}, v{acc+2*k}, v{acc+2*k+1}")
        lp = a.label('Lst1'); ld = a.label('Lst1d')
        a(f"{lp}:")
        a(f"buffer_load_dwordx4 {V(84,4)}, v38, {srd(sWS)}, s{sT0} offen sc1")
        a(f"s_sub_u32 s{sSPIN}, s{sSPIN}, 1")
        a(f"s_cbranch_scc1 {ld}")
        a(f"v_max_u32 v39, v85, v87")
        a(f"v_cmp_eq_u32 vcc, -1, v39")
        a(f"s_cbranch_vccnz {lp}")
        a(f"{ld}:")
        a(f"s_max_i32 s{sSPIN}, s{sSPIN}, 0")
        a("s_waitcnt vmcnt(0)")
        a(f"v_pk_add_f32 {V(80,2)}, {V(84,2)}, {V(86,2)}")
        self.allred2(80, 81, 82)
        self.meanrstd(80, 81, 512)
        for k in range(8):
            a(f"v_pk_fma_f32 {V(acc+2*k,2)}, {V(acc+2*k,2)}, {V(80,2)}, {V(80,2)} op_sel:[0,1,0] op_sel_hi:[1,1,0]")
        for k in range(8):
            a(f"v_cvt_pk_bf16_f32 v{84+k}, v{acc+2*k}, v{acc+2*k+1}")
        a(f"s_lshl_b32 s{sT0}, s{sMT}, 14")
        a(f"s_lshl_b32 s{sT1}, s{sC}, 11")
        a(f"s_add_u32 s{sT0}, s{sT0}, s{sT1}")
        a(f"s_add_u32 s{sT0}, s{sT0}, {HN_OFF}")
        self.lst(f"buffer_store_dwordx4 {V(84,4)}, v{vL16}, {srd(sWS)}, s{sT0} offen\n"
                 f"buffer_store_dwordx4 {V(88,4)}, v{vL16}, {srd(sWS)}, s{sT0} offen offset:1024")
        a(f"s_lshr_b32 s{sT0}, s{sMT}, 1")
        a(f"s_lshl_b32 s{sT0}, s{sT0}, 7")
        a(f"s_and_b32 s{sT1}, s{sMT}, 1")
        a(f"s_lshl_b32 s{sT1}, s{sT1}, 3")
        a(f"s_add_u32 s{sT1}, s{sT1}, s{sC}")
        a(f"s_lshl_b32 s{sT1}, s{sT1}, 2")
        a(f"s_add_u32 s{sT0}, s{sT0}, s{sT1}")
        a(f"s_add_u32 s{sT0}, s{sT0}, {F3_OFF}")
        self.flag(sT0)
        self.ts("hn_pub")

    def allred2(self, x, y, t):
        a = self.a
        a(f"v_permlane32_swap_b32 v{x}, v{y}")
        a(f"v_add_f32 v{x}, v{x}, v{y}")
        a(f"v_mov_b32 v{t}, v{x}")
        a(f"v_permlane16_swap_b32 v{x}, v{t}")
        a(f"v_add_f32 v{x}, v{x}, v{t}")
        a(f"v_mov_b32 v{y}, v{x}")
        a(f"v_permlane32_swap_b32 v{x}, v{y}")

    def meanrstd(self, s, q, n):
        a = self.a
        a(f"v_mul_f32 v{s}, {FH(-1.0/n)}, v{s}")
        a(f"v_mul_f32 v{q}, {FH(1.0/n)}, v{q}")
        a(f"v_fma_f32 v{q}, -v{s}, v{s}, v{q}")
        a(f"v_max_f32 v{q}, 0, v{q}")
        a(f"v_add_f32 v{q}, {FH(1e-5)}, v{q}")
        a(f"v_rsq_f32 v{q}, v{q}")
        a(f"v_mul_f32 v{s}, v{s}, v{q}")

    def gelu(self, r, n, tmp, vC1):
        a = self.a
        for c0 in range(0, n, 16):
            m = min(16, n - c0)
            for k in range(0, m, 2):
                a(f"v_pk_mul_f32 {V(tmp+k,2)}, {V(r+c0+k,2)}, {V(r+c0+k,2)}")
            for k in range(0, m, 2):
                a(f"v_pk_fma_f32 {V(tmp+k,2)}, {V(tmp+k,2)}, {S(sC2,2)}, {V(vC1,2)}")
            for k in range(0, m, 2):
                a(f"v_pk_mul_f32 {V(tmp+k,2)}, {V(tmp+k,2)}, {V(r+c0+k,2)}")
            for k in range(m):
                a(f"v_exp_f32 v{tmp+k}, v{tmp+k}")
            for k in range(0, m, 2):
                a(f"v_pk_add_f32 {V(tmp+k,2)}, {V(tmp+k,2)}, {S(sONE,2)}")
            for k in range(m):
                a(f"v_rcp_f32 v{tmp+k}, v{tmp+k}")
            for k in range(0, m, 2):
                a(f"v_pk_mul_f32 {V(r+c0+k,2)}, {V(r+c0+k,2)}, {V(tmp+k,2)}")

    def p2b(self):
        a = self.a
        vA = 128
        self.barrier()
        self.twin2 = self.win_part(False)
        a(f"v_mov_b32 v32, {FH(self.c1)}")
        a(f"v_mov_b32 v33, {FH(self.c1)}")
        a(f"s_lshl_b32 s{sT0}, s{sKB}, 7")
        a(f"s_add_u32 s{sT0}, s{sT0}, {F3_OFF}")
        a(f"v_lshl_add_u32 v38, v{vI}, 2, s{sT0}")
        self.poll(38, 39, 1)
        self.ts("hn_rdy")
        a(f"s_lshl_b32 s{sT0}, s{sKB}, 15")
        a(f"s_add_u32 s{sT0}, s{sT0}, {HN_OFF}")
        a(f"s_add_u32 s{sT1}, s{sT0}, 16384")
        for ks in range(16):
            if ks and ks % 4 == 0:
                a(f"s_add_u32 s{sT0}, s{sT0}, 4096")
                a(f"s_add_u32 s{sT1}, s{sT1}, 4096")
            for m in range(2):
                a(f"buffer_load_dwordx4 {V(vA+8*ks+4*m,4)}, v{vL16}, {srd(sWS)}, s{sT0+m} offen offset:{(ks%4)*1024} sc1")
        a.ifelse(f"s_bitcmp1_b32 s{sP}, 0", lambda: self.p2b_body(True), lambda: self.p2b_body(False))

    def tileset(self, quad, base):
        if quad:
            d2, kst = self.tr_addrs('quad', vTR, base, 19, 38)
            return [(vTR+t, d2, kst, 3+t) for t in range(4)]
        d2, kst = self.tr_addrs('pairP', vTR, base, 19, 38)
        e2, est = self.tr_addrs('single', vTR+2, base + 32768, 19, 38)
        return [(vTR, d2, kst, 1), (vTR+1, d2, kst, 2), (vTR+2, e2, est, 0)]

    def p2b_body(self, kindA):
        a = self.a
        vA = 128; z2 = 40; ring = 96
        n2 = 4 if kindA else 3
        n1 = 7 - n2
        z1 = z2 + 8*n2
        tiles2 = self.tileset(kindA, R1F)
        items = []
        for ks in range(16):
            for u, (ad, d2, kst, _) in enumerate(tiles2):
                ms = []
                for m in range(2):
                    d = V(z2+8*u+4*m, 4)
                    ms.append(f"v_mfma_f32_16x16x32_bf16 {d}, {V(vA+8*ks+4*m,4)}, {{b}}, {d if ks else 0}")
                items.append((ad, ks*kst, d2, ms))
        self.gemm(items, ring, 8, 5, 2)
        self.ts("z2_gemm")
        self.gelu(z2, 8*n2, ring, 32)
        for k in range(0, 8, 2):
            a(f"v_pk_add_f32 {V(96+k,2)}, {V(z2+k,2)}, {V(z2+8+k,2)}")
            a(f"v_pk_mul_f32 {V(104+k,2)}, {V(z2+k,2)}, {V(z2+k,2)}")
        for u in range(1, n2):
            for k in range(0, 8, 2):
                if u > 1:
                    a(f"v_pk_add_f32 {V(96+k,2)}, {V(96+k,2)}, {V(z2+8*u+k,2)}")
                a(f"v_pk_fma_f32 {V(104+k,2)}, {V(z2+8*u+k,2)}, {V(z2+8*u+k,2)}, {V(104+k,2)}")
        for base in (96, 104):
            for k in range(4):
                a(f"v_add_f32_dpp v{base+k}, v{base+k}, v{base+k} row_ror:8 row_mask:0xf bank_mask:0x3")
            for k in range(4):
                a(f"v_add_f32_dpp v{base+k}, v{base+4+k}, v{base+4+k} row_ror:8 row_mask:0xf bank_mask:0xc")
        for base in (96, 104):
            for k in range(2):
                a(f"v_add_f32_dpp v{base+k}, v{base+k}, v{base+k} row_half_mirror row_mask:0xf bank_mask:0x5")
            for k in range(2):
                a(f"v_add_f32_dpp v{base+k}, v{base+2+k}, v{base+2+k} row_half_mirror row_mask:0xf bank_mask:0xa")
        for qp in ("[1,0,3,2]", "[2,3,0,1]"):
            for r in (96, 97, 104, 105):
                a(f"v_add_f32_dpp v{r}, v{r}, v{r} quad_perm:{qp} row_mask:0xf bank_mask:0xf")
        a(f"v_and_b32 v19, 1, v{vLANE}")
        a(f"v_cmp_eq_u32 vcc, 1, v19")
        a(f"v_cndmask_b32 v96, v96, v97, vcc")
        a(f"v_cndmask_b32 v97, v104, v105, vcc")
        a(f"v_max_f32 v97, 0, v97")
        a(f"v_lshrrev_b32 v38, 2, v{vLANE}")
        a(f"v_lshl_or_b32 v38, v38, 1, v19")
        a(f"v_lshlrev_b32 v38, 7, v38")
        a(f"s_lshl_b32 s{sT0}, s{sKB}, 12")
        a(f"s_lshl_b32 s{sT1}, s{sP}, 3")
        a(f"s_add_u32 s{sT0}, s{sT0}, s{sT1}")
        a(f"s_add_u32 s{sT0}, s{sT0}, {ST2_OFF}")
        a(f"s_mov_b32 exec_lo, 0x33333333")
        a(f"s_mov_b32 exec_hi, 0x33333333")
        self.lst(f"buffer_store_dwordx2 {V(96,2)}, v38, {srd(sWS)}, s{sT0} offen")
        a(f"s_mov_b64 exec, -1")
        self.ts("st2_pub")
        a.wait(*self.twin2)
        self.barrier()
        tiles1 = self.tileset(not kindA, R0)
        items = []
        for ks in range(16):
            for u, (ad, d2, kst, _) in enumerate(tiles1):
                ms = []
                for m in range(2):
                    d = V(z1+8*u+4*m, 4)
                    ms.append(f"v_mfma_f32_16x16x32_bf16 {d}, {{b}}, {V(vA+8*ks+4*m,4)}, {d if ks else 0}")
                items.append((ad, ks*kst, d2, ms))
        self.gemm(items, ring, 8, 5, 2)
        self.ts("z1_gemm")
        a(f"v_lshlrev_b32 v38, 6, v{vLANE}")
        a(f"s_lshl_b32 s{sT0}, s{sKB}, 12")
        a(f"s_add_u32 s{sT0}, s{sT0}, {ST2_OFF}")
        lp = a.label('Lst2'); ld = a.label('Lst2d')
        a(f"{lp}:")
        for k in range(4):
            a(f"buffer_load_dwordx4 {V(128+4*k,4)}, v38, {srd(sWS)}, s{sT0} offen offset:{16*k} sc1")
        a(f"s_sub_u32 s{sSPIN}, s{sSPIN}, 1")
        a(f"s_cbranch_scc1 {ld}")
        a(f"v_max_u32 v39, v129, v131")
        for k in range(1, 4):
            a(f"v_max3_u32 v39, v39, v{129+4*k}, v{131+4*k}")
        a(f"v_cmp_eq_u32 vcc, -1, v39")
        a(f"s_cbranch_vccnz {lp}")
        a(f"{ld}:")
        a(f"s_max_i32 s{sSPIN}, s{sSPIN}, 0")
        a("s_waitcnt vmcnt(0)")
        for k in range(4):
            a(f"v_pk_add_f32 {V(128+2*k,2)}, {V(128+2*k,2)}, {V(136+2*k,2)}")
        for k in range(2):
            a(f"v_pk_add_f32 {V(128+2*k,2)}, {V(128+2*k,2)}, {V(132+2*k,2)}")
        a(f"v_pk_add_f32 {V(128,2)}, {V(128,2)}, {V(130,2)}")
        for r in (128, 129):
            a(f"v_add_f32_dpp v{r}, v{r}, v{r} quad_perm:[1,0,3,2] row_mask:0xf bank_mask:0xf")
        self.meanrstd(128, 129, 896)
        a(f"v_and_b32 v19, 1, v{vLANE}")
        a(f"v_cmp_eq_u32 vcc, 1, v19")
        a(f"v_cndmask_b32 v128, v128, v129, vcc")
        a(f"v_lshlrev_b32 v19, 7, v19")
        a(f"v_lshrrev_b32 v38, 1, v{vLANE}")
        a(f"v_lshl_add_u32 v19, v38, 2, v19")
        a(f"s_lshl_b32 s{sT0}, s{sWV}, 8")
        a(f"s_add_u32 s{sT0}, s{sT0}, {SCR2}")
        a(f"v_add_u32 v19, s{sT0}, v19")
        t = a(f"ds_write_b32 v19, v128")
        a(f"v_lshl_add_u32 v38, v{vG}, 5, s{sT0}")
        a.wait(t)
        for k in range(2):
            a(f"ds_read_b128 {V(132+4*k,4)}, v38 offset:{16*k}")
            a(f"ds_read_b128 {V(140+4*k,4)}, v38 offset:{128+16*k}")
        for u in range(n2):
            for k in range(0, 8, 2):
                a(f"v_pk_fma_f32 {V(z2+8*u+k,2)}, {V(z2+8*u+k,2)}, {V(140+k,2)}, {V(132+k,2)}")
        for u, (_, _, _, ni) in enumerate(tiles2):
            for k in range(4):
                a(f"v_cvt_pk_bf16_f32 v{148+4*u+k}, v{z2+8*u+2*k}, v{z2+8*u+2*k+1}")
            a(f"s_lshl_b32 s{sT0}, s{sN+ni}, 6")
            a(f"s_add_u32 s{sT0}, s{sT0}, s{sKB}")
            a(f"s_lshl_b32 s{sT0}, s{sT0}, 10")
            a(f"s_add_u32 s{sT0}, s{sT0}, {Z2_OFF}")
            a(f"buffer_store_dwordx4 {V(148+4*u,4)}, v{vL16}, {srd(sWS)}, s{sT0} offen sc1")
        a("s_waitcnt vmcnt(0)")
        a("s_barrier")
        def arrive():
            a(f"s_lshl_b32 s{sT0}, s{sC}, 7")
            a(f"s_add_u32 s{sT0}, s{sT0}, {F4_OFF}")
            a(f"v_mov_b32 v19, 1")
            a("s_mov_b64 exec, 1")
            a(f"buffer_atomic_add v19, off, {srd(sWS)}, s{sT0}")
            a("s_mov_b64 exec, -1")
        a.ifonly(f"s_cmp_lg_u32 s{sWV}, 0", arrive)
        self.ts("z2_pub")
        self.gelu(z1, 8*n1, ring, 32)
        a(f"v_lshlrev_b32 v38, 3, v{vLANE}")
        a(f"s_mul_i32 s{sT1}, s{sKB}, {2*56*512}")
        a(f"s_add_u32 s{sT1}, s{sT1}, {Z1_OFF}")
        for u, (_, _, _, ni) in enumerate(tiles1):
            for k in range(4):
                a(f"v_cvt_pk_bf16_f32 v{128+4*u+k}, v{z1+8*u+2*k}, v{z1+8*u+2*k+1}")
            a(f"s_lshl_b32 s{sT0}, s{sN+ni}, 9")
            a(f"s_add_u32 s{sT0}, s{sT0}, s{sT1}")
            a(f"s_add_u32 s{sT2}, s{sT0}, {56*512}")
            self.lst(f"buffer_store_dwordx2 {V(128+4*u,2)}, v38, {srd(sWS)}, s{sT0} offen\n"
                     f"buffer_store_dwordx2 {V(130+4*u,2)}, v38, {srd(sWS)}, s{sT2} offen")
        a(f"s_lshl_b32 s{sT0}, s{sKB}, 7")
        a(f"s_lshl_b32 s{sT1}, s{sP}, 2")
        a(f"s_add_u32 s{sT0}, s{sT0}, s{sT1}")
        a(f"s_add_u32 s{sT0}, s{sT0}, {F4B_OFF}")
        self.flag(sT0)
        self.ts("z1_pub")

    def p3(self):
        a = self.a
        rpg = self.dma_voffs('quad', 1024, 19, 38)
        a(f"s_lshl_b32 s{sT0}, s{sC}, 7")
        self.dma_image(sWOUT, 1024, rpg, sT0, R1F, 0, 12)
        self.twout = self.dma_image(sWOUT, 1024, rpg, sT0, R0, 0, 16, krow0=12*32)
        for r in range(8):
            tok = self.wsp_issue(r)
            t = self.wsp_read(r, tok)
            a.wait(t)
        self.ts("wsp_rdy")
        a(f"s_lshr_b32 s{sT0}, s{sMT}, 1")
        a(f"s_lshl_b32 s{sT0}, s{sT0}, 7")
        a(f"s_lshl_b32 s{sT1}, s{sC}, 3")
        a(f"s_add_u32 s{sT0}, s{sT0}, s{sT1}")
        a(f"s_add_u32 s{sT0}, s{sT0}, {F4B_OFF}")
        a(f"v_and_b32 v38, 1, v{vLANE}")
        a(f"v_lshl_add_u32 v38, v38, 2, s{sT0}")
        self.poll(38, 39, 1)
        vZ1 = 40; vB = 34
        a(f"v_lshlrev_b32 v38, 3, v{vLANE}")
        a(f"s_mul_i32 s{sT1}, s{sMT}, {56*512}")
        a(f"s_add_u32 s{sT1}, s{sT1}, {Z1_OFF}")
        for n in range(7):
            a(f"s_lshl_b32 s{sT0}, s{sN+n}, 9")
            a(f"s_add_u32 s{sT0}, s{sT0}, s{sT1}")
            a(f"buffer_load_dwordx2 {V(vZ1+2*n,2)}, v38, {srd(sWS)}, s{sT0} offen sc1")
        self.rowoff(38, 19)
        a(f"v_lshlrev_b32 v38, 1, v38")
        a(f"buffer_load_ushort v{vB}, v38, {srd(sBSP)}, 0 offen")
        def waitz2():
            a(f"s_lshl_b32 s{sT0}, s{sC}, 7")
            a(f"s_add_u32 s{sT0}, s{sT0}, {F4_OFF}")
            a(f"v_mov_b32 v38, s{sT0}")
            self.poll(38, 39, 31)
        a.ifonly(f"s_cmp_lg_u32 s{sWV}, 0", waitz2)
        self.barrier()
        self.ts("z2_rdy")
        a(f"v_lshlrev_b32 v{vB}, 16, v{vB}")
        ring = 128; acc = 64; vBA = 36; vW = 35; vR = 37; red = 96; vY = 112
        a(f"s_lshl_b32 s{sT0}, s{sWV}, 12")
        a(f"s_add_u32 s{sT0}, s{sT0}, {STG}")
        a(f"v_add_u32 v{vW}, s{sT0}, v{vL16}")
        a(f"s_lshl_b32 s{sT0}, s{sWV}, 10")
        a(f"s_add_u32 s{sT0}, s{sT0}, {STG}")
        a(f"v_add_u32 v{vR}, s{sT0}, v{vL16}")
        a(f"s_lshl_b32 s{sT3}, s{sWV}, 14")
        a(f"s_add_u32 s{sT3}, s{sT3}, {Z2_OFF}")
        a(f"s_mul_i32 s{sT2}, s{sMT}, {28*1024}")
        a(f"s_add_u32 s{sT2}, s{sT2}, {Y_OFF}")
        def setb(n):
            a(f"s_lshl_b32 s{sT0}, s{sN+n}, 16")
            a(f"s_add_u32 s{sT0}, s{sT0}, s{sT3}")
            a(f"v_add_u32 v{vBA}, s{sT0}, v{vL16}")
        def loadb(s):
            a(f"buffer_load_dwordx4 {V(ring+4*s,4)}, v{vBA}, {srd(sWS)}, s{sROT+(s>>1)} offen offset:{(s&1)*1024} sc1")
        def wr(n):
            for mt in range(4):
                a(f"ds_write_b128 v{vW}, {V(acc+16*(n&1)+4*mt,4)} offset:{(n&1)*16384+mt*1024}")
        def rd(n):
            for w in range(4):
                a(f"ds_read_b128 {V(red+4*w,4)}, v{vR} offset:{(n&1)*16384+w*4096}")
        def fin(n):
            for k in range(4):
                a(f"v_add_f32 v{red+k}, v{red+k}, v{red+4+k}")
                a(f"v_add_f32 v{red+8+k}, v{red+8+k}, v{red+12+k}")
            for k in range(4):
                a(f"v_add_f32 v{red+k}, v{red+k}, v{vB}")
            for h in range(2):
                a(f"v_lshlrev_b32 v{red+4+2*h}, 16, v{vZ1+2*n+h}")
                a(f"v_and_b32 v{red+5+2*h}, 0xffff0000, v{vZ1+2*n+h}")
            for k in range(4):
                a(f"v_add_f32 v{red+k}, v{red+k}, v{red+8+k}")
            for k in range(4):
                a(f"v_mul_f32 v{red+k}, v{red+k}, v{red+4+k}")
            half = 0 if n == 0 else (n - 1) & 1
            for h in range(2):
                a(f"v_cvt_pk_bf16_f32 v{vY+2*half+h}, v{red+2*h}, v{red+2*h+1}")
            if n == 0:
                a(f"s_lshr_b32 s{sT0}, s{sN}, 1")
                a(f"s_lshl_b32 s{sT0}, s{sT0}, 10")
                a(f"s_and_b32 s{sT1}, s{sN}, 1")
                a(f"s_lshl_b32 s{sT1}, s{sT1}, 3")
                a(f"s_add_u32 s{sT0}, s{sT0}, s{sT1}")
                a(f"s_add_u32 s{sT0}, s{sT0}, s{sT2}")
                self.lst(f"buffer_store_dwordx2 {V(vY,2)}, v{vL16}, {srd(sWS)}, s{sT0} offen")
            elif half:
                a(f"s_lshr_b32 s{sT0}, s{sN+n}, 1")
                a(f"s_lshl_b32 s{sT0}, s{sT0}, 10")
                a(f"s_add_u32 s{sT0}, s{sT0}, s{sT2}")
                self.lst(f"buffer_store_dwordx4 {V(vY,4)}, v{vL16}, {srd(sWS)}, s{sT0} offen")
        setb(0)
        for s in range(16):
            loadb(s)
        for n in range(7):
            if n < 6:
                setb(n + 1)
            for s in range(16):
                for mt in range(4):
                    d = V(acc+16*(n&1)+4*mt, 4)
                    a(f"v_mfma_f32_16x16x32_bf16 {d}, {V(ring+4*s,4)}, {A(16*s+4*mt,4)}, {d if s else 0}")
                if n < 6:
                    loadb(s)
                if n > 0:
                    if s == 1:
                        wr(n - 1)
                    if s == 5:
                        self.barrier()
                        rd(n - 1)
                    if s == 8:
                        fin(n - 1)
        wr(6)
        self.barrier()
        rd(6)
        fin(6)
        a(f"s_lshl_b32 s{sT0}, s{sMT}, 7")
        a(f"s_lshl_b32 s{sT1}, s{sC}, 2")
        a(f"s_add_u32 s{sT0}, s{sT0}, s{sT1}")
        a(f"s_add_u32 s{sT0}, s{sT0}, {F5_OFF}")
        self.flag(sT0)
        self.ts("y_pub")

    def p4(self):
        a = self.a
        vA = 128; acc = 64
        d2, kst = self.tr_addrs('quad', vTR, R0, 19, 38)
        for t in range(4):
            a(f"v_add_u32 v{40+t}, {R1F}, v{vTR+t}")
        a(f"s_lshl_b32 s{sT0}, s{sMT}, 7")
        a(f"s_add_u32 s{sT0}, s{sT0}, {F5_OFF}")
        a(f"v_and_b32 v38, 7, v{vLANE}")
        a(f"v_lshl_add_u32 v38, v38, 2, s{sT0}")
        self.poll(38, 39, 1)
        self.ts("y_rdy")
        a(f"s_mul_i32 s{sT0}, s{sMT}, {28*1024}")
        a(f"s_add_u32 s{sT0}, s{sT0}, {Y_OFF}")
        for ks in range(28):
            if ks and ks % 4 == 0:
                a(f"s_add_u32 s{sT0}, s{sT0}, 4096")
            a(f"buffer_load_dwordx4 {V(vA+4*ks,4)}, v{vL16}, {srd(sWS)}, s{sT0} offen offset:{(ks%4)*1024} sc1")
        for t in range(4):
            for h in range(2):
                a(f"v_lshlrev_b32 v{acc+4*t+2*h}, 16, v{vH+2*t+h}")
                a(f"v_and_b32 v{acc+4*t+2*h+1}, 0xffff0000, v{vH+2*t+h}")
        items = []
        for ks in range(28):
            for t in range(4):
                d = V(acc+4*t, 4)
                ad, off = (40 + t, ks*kst) if ks < 12 else (vTR + t, (ks-12)*kst)
                items.append((ad, off, d2, [f"v_mfma_f32_16x16x32_bf16 {d}, {{b}}, {V(vA+4*ks,4)}, {d}"]))
        self.gemm(items, 80, 12, 7, 4)
        self.rowoff(38, 19)
        a(f"v_lshlrev_b32 v38, 10, v38")
        a(f"v_lshl_add_u32 v38, v{vG}, 3, v38")
        a(f"s_lshl_b32 s{sT0}, s{sC}, 7")
        for t in range(4):
            for h in range(2):
                a(f"v_cvt_pk_bf16_f32 v{80+2*t+h}, v{acc+4*t+2*h}, v{acc+4*t+2*h+1}")
            a(f"buffer_store_dwordx2 {V(80+2*t,2)}, v38, {srd(sOUT)}, s{sT0} offen offset:{32*t}")
        self.ts("end")

    def build(self):
        a = self.a
        self.setup()
        for name, fn in (('p1', self.p1), ('p2a', self.p2a), ('p2b', self.p2b), ('p3', self.p3), ('p4', self.p4)):
            fn()
            if self.stop == name:
                break
        if self.prof:
            a(f"s_lshl_b32 s{sT0}, s2, 10")
            a(f"s_lshl_b32 s{sT1}, s{sWV}, 8")
            a(f"s_add_u32 s{sT0}, s{sT0}, s{sT1}")
            a(f"s_add_u32 s{sT0}, s{sT0}, {TS_OFF}")
            a(f"v_writelane_b32 v{vTS}, s{sSPIN}, 62")
            a(f"v_writelane_b32 v{vTS}, s{sMODE}, 63")
            a(f"v_lshlrev_b32 v19, 2, v{vLANE}")
            a(f"buffer_store_dword v{vTS}, v19, {srd(sWS)}, s{sT0} offen")
        if self.padfrom:
            a("L_pad:")
            a("s_memrealtime s[94:95]")
            a("s_waitcnt lgkmcnt(0)")
            a("s_sub_u32 s94, s94, s96")
            a("s_cmp_lt_u32 s94, 6000")
            a("s_cbranch_scc1 L_pad")
        if self.dbgts:
            def dump():
                a(f"v_readlane_b32 s{sT0}, v{vTS}, 0")
                a(f"v_subrev_u32 v{vTS}, s{sT0}, v{vTS}")
                a(f"v_cmp_lt_u32 vcc, 6, v{vLANE}")
                a(f"v_cndmask_b32_e64 v38, 1, 3, vcc")
                a(f"v_add_u32 v38, v38, v{vLANE}")
                a(f"v_lshlrev_b32 v38, 2, v38")
                a(f"s_mov_b64 exec, 0x1ffe")
                a(f"buffer_store_dword v{vTS}, v38, {srd(sDBG)}, 0 offen")
                a(f"s_mov_b64 exec, -1")
            a(f"s_lshl_b32 s{sT0}, s2, 2")
            a(f"s_add_u32 s{sT0}, s{sT0}, s{sWV}")
            a.ifonly(f"s_cmp_lg_u32 s{sT0}, {4*100}", dump)
        a("L_end:")
        a("s_endpgm")
        body = a.finish()
        ref = open('cdna_kernels/' + NAME + '.s.ref').read().split('\n')
        hdr = [l for l in ref if l.startswith(';') and '@launch' not in l]
        k = NAME + "_kernel"
        txt = "\n".join(hdr) + f"\n; @launch grid=(256,1,1) block=(256,1,1) lds={LDS_SIZE}\n"
        txt += '.amdgcn_target "amdgcn-amd-amdhsa--gfx950"\n.text\n'
        txt += f".globl {k}\n.p2align 8\n.type {k},@function\n{k}:\n" + body
        txt += f""".section .rodata,"a"
.p2align 6
.amdhsa_kernel {k}
  .amdhsa_next_free_vgpr 512
  .amdhsa_next_free_sgpr 102
  .amdhsa_accum_offset 256
  .amdhsa_group_segment_fixed_size 0
  .amdhsa_kernarg_size 96
  .amdhsa_user_sgpr_count 2
  .amdhsa_user_sgpr_kernarg_segment_ptr 1
  .amdhsa_system_sgpr_workgroup_id_x 1
.end_amdhsa_kernel
"""
        return txt


if __name__ == "__main__":
    import argparse, json
    ap = argparse.ArgumentParser()
    ap.add_argument('-o', default='cdna_kernels/' + NAME + '.s')
    ap.add_argument('--prof', action='store_true')
    ap.add_argument('--slow', action='store_true')
    ap.add_argument('--stop')
    ap.add_argument('--padfrom')
    ap.add_argument('--dbgts')
    ap.add_argument('--opt', default='')
    args = ap.parse_args()
    g = Gen(padfrom=args.padfrom, prof=args.prof, stop=args.stop, force_slow=args.slow, dbgts=args.dbgts.split(',') if args.dbgts else None, opt=[o for o in args.opt.split(',') if o])
    txt = g.build()
    if args.prof:
        txt = txt.replace("; @launch", "; tsnames " + ",".join(g.tsnames) + "\n; @launch", 1)
    open(args.o, 'w').write(txt)
    print("wrote", args.o, len(txt), "bytes,", txt.count("\n"), "lines")
```

```python
import sys, struct, math
sys.path.insert(0, 'work')
from asmlib import *

NAME = "sequential_preLN__linear_kernel_hedgehog__mixer_gmlp__prompt"

def f2u(x):
    return struct.unpack('<I', struct.pack('<f', x))[0]
def FH(x):
    return "0x%08x" % f2u(x)

MB = 1 << 20
O_OFF = 0
HN_OFF = 2 * MB
Z2_OFF = 4 * MB
Z1_OFF = 8 * MB
Y_OFF = 12 * MB
CLR_OFF = 16 * MB
KV_OFF = CLR_OFF
KVZ_OFF = CLR_OFF + MB
ST1_OFF = KVZ_OFF + 0x10000
ST2_OFF = ST1_OFF + 0x20000
F2_OFF = ST2_OFF + 0x40000
F3_OFF = F2_OFF + 0x2000
F4B_OFF = F3_OFF + 0x2000
F5_OFF = F4B_OFF + 0x2000
F4_OFF = F5_OFF + 0x4000
TS_OFF = 18 * MB
WS_SIZE = 19 * MB

R0 = 0
RK = 65536
RV = 98304
RQ = 131072
R1F = 65536
STG = 131072
SCR = 131072 - 20480
SCR2 = 131072 - 16384
LDS_SIZE = 163840

sX_, sWQKV, sWO, sWIN, sWSP, sWOUT, sOUT, sWS, sWPHI, sBSP, sDBG = 4, 8, 12, 16, 20, 24, 28, 32, 36, 40, 44
sXC, sJ, sRB, sP, sRB64, sC, sWV, sMODE, sSPIN, sKB, sMT = range(48, 59)
sT0, sT1, sT2, sT3, sT4 = range(59, 64)
sN = 64
sROT = 72
sL = 80
sC2 = 82
sONE = 84
sSO = 86
sSP = 87
sTS = 98

def srd(b): return S(b, 4)

vLANE, vL16, vTS, vI, vG = 0, 1, 2, 3, 4
vSTG = 5
vRDA = 9
vDMA = 11
vTR = 15
vT = 19
vST = 20
vH = 24


class Gen:
    def __init__(self, prof=False, stop=None, force_slow=False, dbgts=None, opt=(), padfrom=None):
        self.padfrom = padfrom
        self.dbgts = dbgts
        self.opt = set(opt)
        self.a = Asm()
        self.prof = prof
        self.stop = stop
        self.force_slow = force_slow
        self.nts = 0
        self.tsnames = []

    def ts(self, name):
        if self.padfrom == name:
            self.a("s_memrealtime s[96:97]")
            self.a("s_waitcnt lgkmcnt(0)")
        if not self.prof:
            return
        if self.dbgts and name not in self.dbgts:
            return
        a = self.a
        if name in self.tsnames:
            idx = self.tsnames.index(name)
        else:
            idx = len(self.tsnames); self.tsnames.append(name)
        a(f"s_memrealtime {S(sTS,2)}")
        a("s_waitcnt lgkmcnt(0)")
        a(f"v_writelane_b32 v{vTS}, s{sTS}, {idx}")

    def barrier(self):
        self.a("s_waitcnt lgkmcnt(0)")
        self.a("s_barrier")

    def lst(self, text):
        slow = "\n".join(l + " sc1" if l.strip().startswith(('buffer_store', 'global_store')) else l for l in text.strip().split('\n'))
        return self.a.both(f"s_cmp_lg_u32 s{sMODE}, 0", text, slow)

    def poll(self, vaddr, vtmp, expect):
        a = self.a
        lp = a.label('Lpoll'); ld = a.label('Lpd')
        a(f"{lp}:")
        a(f"buffer_load_dword v{vtmp}, v{vaddr}, {srd(sWS)}, 0 offen sc1")
        a(f"s_sub_u32 s{sSPIN}, s{sSPIN}, 1")
        a(f"s_cbranch_scc1 {ld}")
        a(f"v_cmp_ne_u32 vcc, {expect}, v{vtmp}")
        a(f"s_cbranch_vccnz {lp}")
        a(f"{ld}:")
        a(f"s_max_i32 s{sSPIN}, s{sSPIN}, 0")
        a("s_waitcnt vmcnt(0)")

    def flag(self, soff_expr_reg):
        a = self.a
        a("s_waitcnt vmcnt(0)")
        a(f"v_mov_b32 v{vT}, 1")
        a("s_mov_b64 exec, 1")
        self.lst(f"buffer_store_dword v{vT}, off, {srd(sWS)}, s{soff_expr_reg}")
        a("s_mov_b64 exec, -1")

    def dma_voffs(self, kind, rs, t0, t1):
        a = self.a
        if kind in ('pairN', 'pairP'):
            rows = 16
            a(f"v_lshrrev_b32 v{t0}, 2, v{vLANE}")
            if kind == 'pairN':
                a(f"v_lshrrev_b32 v{t1}, 5, v{vLANE}")
            else:
                a(f"v_and_b32 v{t1}, 1, v{vG}")
            a(f"v_lshlrev_b32 v{t1}, 1, v{t1}")
            a(f"v_xor_b32 v{t1}, v{t1}, v{vLANE}")
            a(f"v_and_b32 v{t1}, 3, v{t1}")
        elif kind == 'quad':
            rows = 8
            a(f"v_lshrrev_b32 v{t0}, 3, v{vLANE}")
            a(f"v_lshlrev_b32 v{t1}, 1, v{vG}")
            a(f"v_xor_b32 v{t1}, v{t1}, v{vLANE}")
            a(f"v_and_b32 v{t1}, 7, v{t1}")
        else:
            rows = 32
            a(f"v_lshrrev_b32 v{t0}, 1, v{vLANE}")
            a(f"v_and_b32 v{t1}, 1, v{vLANE}")
        a(f"v_mul_u32_u24 v{t0}, {rs}, v{t0}")
        a(f"v_lshl_add_u32 v{vDMA}, v{t1}, 4, v{t0}")
        for u in range(1, 4):
            a(f"v_add_u32 v{vDMA+u}, {u*(rows*rs-1024)}, v{vDMA}")
        return rows * 4

    def dma_group(self, vbase, srdb, flags=""):
        tok = None
        for u in range(4):
            off = f" offset:{u*1024}" if u else ""
            tok = self.a(f"buffer_load_dwordx4 v{vbase+u}, {srd(srdb)}, s{sSO} offen{off} {flags} lds")
        return tok

    def dma_image(self, srdb, rs, rows_per_group, col_sreg, ldsbase, g0, ngroups_total, krow0=0):
        a = self.a
        per = ngroups_total // 4
        a(f"s_mul_i32 s{sSO}, s{sWV}, {per*rows_per_group*rs}")
        a(f"s_add_u32 s{sSO}, s{sSO}, s{col_sreg}")
        if krow0:
            a(f"s_add_u32 s{sSO}, s{sSO}, {krow0*rs}")
        a(f"s_mul_i32 s{sT4}, s{sWV}, {per*4096}")
        a(f"s_add_u32 m0, s{sT4}, {ldsbase}")
        tok = None
        for g in range(per):
            if g:
                a(f"s_add_u32 s{sSO}, s{sSO}, {rows_per_group*rs}")
                a(f"s_add_u32 m0, m0, 4096")
            tok = self.dma_group(vDMA, srdb)
        return tok

    def tr_addrs(self, kind, dst, ldsbase, t0, t1):
        a = self.a
        a(f"v_bfe_u32 v{t0}, v{vLANE}, 2, 2")
        a(f"v_lshl_add_u32 v{t0}, v{vG}, {3 if kind == 'pairN' else 2}, v{t0}")
        a(f"v_and_b32 v{t1}, 3, v{vLANE}")
        a(f"v_lshlrev_b32 v{t1}, 3, v{t1}")
        if kind in ('pairN', 'pairP'):
            a(f"v_lshl_add_u32 v{t1}, v{t0}, 6, v{t1}")
            a(f"v_and_b32 v{t0}, 1, v{vG}")
            a(f"v_lshl_add_u32 v{t1}, v{t0}, 5, v{t1}")
            a(f"v_add_u32 v{dst}, {ldsbase}, v{t1}")
            a(f"v_xor_b32 v{dst+1}, 32, v{dst}")
            return (256 if kind == 'pairN' else 1024), 2048
        if kind == 'quad':
            a(f"v_lshl_add_u32 v{t1}, v{t0}, 7, v{t1}")
            a(f"v_bfe_u32 v{t0}, v{t0}, 1, 2")
            a(f"v_lshl_add_u32 v{t1}, v{t0}, 5, v{t1}")
            a(f"v_add_u32 v{dst}, {ldsbase}, v{t1}")
            for t in range(1, 4):
                a(f"v_xor_b32 v{dst+t}, {32*t}, v{dst}")
            return 2048, 4096
        a(f"v_lshl_add_u32 v{t1}, v{t0}, 5, v{t1}")
        a(f"v_add_u32 v{dst}, {ldsbase}, v{t1}")
        return 512, 1024

    def stg_voffs(self, rs, t0, t1):
        a = self.a
        a(f"v_lshrrev_b32 v{t0}, 5, v{vLANE}")
        a(f"v_bfe_u32 v{t1}, v{vLANE}, 3, 2")
        a(f"v_lshl_add_u32 v{t0}, v{t0}, 3, v{t1}")
        a(f"v_mul_u32_u24 v{t0}, {rs}, v{t0}")
        a(f"v_xor_b32 v{t1}, v{vG}, v{vLANE}")
        a(f"v_and_b32 v{t1}, 7, v{t1}")
        a(f"v_lshl_add_u32 v{vSTG}, v{t1}, 4, v{t0}")
        a(f"v_xor_b32 v{t1}, 64, v{vSTG}")
        a(f"v_add_u32 v{vSTG+1}, {16*rs-1024}, v{t1}")
        a(f"v_add_u32 v{vSTG+2}, {4*rs-2048}, v{vSTG}")
        a(f"v_add_u32 v{vSTG+3}, {20*rs-3072}, v{t1}")

    def stg_rdaddr(self, base, wavestride, t0):
        a = self.a
        a(f"v_lshrrev_b32 v{t0}, 1, v{vI}")
        a(f"v_xor_b32 v{t0}, v{t0}, v{vG}")
        a(f"v_lshlrev_b32 v{t0}, 4, v{t0}")
        a(f"v_lshl_add_u32 v{t0}, v{vI}, 7, v{t0}")
        a(f"s_mul_i32 s{sT4}, s{sWV}, {wavestride}")
        a(f"s_add_u32 s{sT4}, s{sT4}, {base}")
        a(f"v_add_u32 v{vRDA}, s{sT4}, v{t0}")
        a(f"v_xor_b32 v{vRDA+1}, 64, v{vRDA}")

    def gemm(self, items, ring, nring, la, group):
        a = self.a
        assert la + group <= nring + 0 or la < nring
        toks = {}
        def rd(idx, half):
            addr, off, d2, _ = items[idx]
            r = ring + 4 * (idx % nring) + 2 * half
            toks[idx] = a(f"ds_read_b64_tr_b16 {V(r,2)}, v{addr} offset:{off + d2*half}")
        for idx in range(min(la, len(items))):
            rd(idx, 0); rd(idx, 1)
        for idx, it in enumerate(items):
            if idx % group == 0:
                last = min(idx + group, len(items)) - 1
                assert last in toks, "look-ahead smaller than wait group"
                a.wait(toks[last])
            b = V(ring + 4 * (idx % nring), 4)
            pend = [0, 1] if idx + la < len(items) else []
            ms = it[3]
            for k, m in enumerate(ms):
                a(m.format(b=b))
                if pend:
                    rd(idx + la, pend.pop(0))
            while pend:
                rd(idx + la, pend.pop(0))

    def red4(self, op, r, dst):
        a = self.a
        a(f"v_permlane32_swap_b32 v{r[0]}, v{r[1]}")
        a(f"v_permlane32_swap_b32 v{r[2]}, v{r[3]}")
        a(f"{op} v{r[0]}, v{r[0]}, v{r[1]}")
        a(f"{op} v{r[2]}, v{r[2]}, v{r[3]}")
        a(f"v_permlane16_swap_b32 v{r[0]}, v{r[2]}")
        a(f"{op} v{dst}, v{r[0]}, v{r[2]}")

    def bc4(self, r):
        a = self.a
        a(f"v_mov_b32 v{r[2]}, v{r[0]}")
        a(f"v_permlane16_swap_b32 v{r[0]}, v{r[2]}")
        a(f"v_mov_b32 v{r[1]}, v{r[0]}")
        a(f"v_mov_b32 v{r[3]}, v{r[2]}")
        a(f"v_permlane32_swap_b32 v{r[0]}, v{r[1]}")
        a(f"v_permlane32_swap_b32 v{r[2]}, v{r[3]}")

    def setup(self):
        a = self.a
        a(f"s_cmp_ge_u32 s2, 256")
        a(f"s_cbranch_scc1 L_end")
        a(f"s_load_dwordx16 s[64:79], s[0:1], 0")
        a(f"s_load_dwordx8 s[80:87], s[0:1], 64")
        a(f"v_lshrrev_b32 v1, 6, v0")
        a(f"v_and_b32 v{vLANE}, 63, v0")
        a(f"v_readfirstlane_b32 s{sWV}, v1")
        a(f"v_lshlrev_b32 v{vL16}, 4, v{vLANE}")
        a(f"v_and_b32 v{vI}, 15, v{vLANE}")
        a(f"v_lshrrev_b32 v{vG}, 4, v{vLANE}")
        a(f"v_mov_b32 v{vTS}, 0")
        a(f"s_and_b32 s{sXC}, s2, 7")
        a(f"s_lshr_b32 s{sJ}, s2, 3")
        a(f"s_lshr_b32 s{sT0}, s{sJ}, 4")
        a(f"s_lshl_b32 s{sRB}, s{sXC}, 1")
        a(f"s_add_u32 s{sRB}, s{sRB}, s{sT0}")
        a(f"s_and_b32 s{sP}, s{sJ}, 15")
        a(f"s_and_b32 s{sT0}, s{sJ}, 1")
        a(f"s_lshl_b32 s{sRB64}, s{sRB}, 1")
        a(f"s_add_u32 s{sRB64}, s{sRB64}, s{sT0}")
        a(f"s_lshr_b32 s{sC}, s{sP}, 1")
        a(f"s_lshl_b32 s{sKB}, s{sRB}, 2")
        a(f"s_add_u32 s{sKB}, s{sKB}, s{sWV}")
        a(f"s_lshl_b32 s{sMT}, s{sRB64}, 2")
        a(f"s_add_u32 s{sMT}, s{sMT}, s{sWV}")
        a(f"s_mov_b32 s{sSPIN}, 0x80000")
        a(f"s_mov_b32 s{sMODE}, 1")
        a("s_waitcnt lgkmcnt(0)")
        for (b, p, n) in ((sX_, 0, 2048*512*2), (sWQKV, 1, 512*1536*2), (sWPHI, 2, 32*16*16*2), (sWO, 3, 512*512*2),
                          (sWIN, 5, 512*1792*2), (sWSP, 6, 2048*2048*2), (sBSP, 7, 2048*2), (sWOUT, 8, 896*512*2),
                          (sOUT, 9, 2048*512*2), (sDBG, 10, 256), (sWS, 11, WS_SIZE)):
            a(f"s_mov_b32 s{b}, s{64+2*p}")
            a(f"s_and_b32 s{b+1}, s{65+2*p}, 0xffff")
            a(f"s_mov_b32 s{b+2}, {n}")
            a(f"s_mov_b32 s{b+3}, 0x20000")
        self.ts("start")
        L = math.log2(math.e)
        k = math.sqrt(2.0 / math.pi)
        self.c1 = -2.0 * k * L
        self.c2 = self.c1 * 0.044715
        a(f"s_mov_b32 s{sL}, {FH(L)}")
        a(f"s_mov_b32 s{sL+1}, {FH(L)}")
        a(f"s_mov_b32 s{sC2}, {FH(self.c2)}")
        a(f"s_mov_b32 s{sC2+1}, {FH(self.c2)}")
        a(f"s_mov_b32 s{sONE}, 1.0")
        a(f"s_mov_b32 s{sONE+1}, 1.0")
        a(f"s_mul_i32 s{sT0}, s{sC}, 3")
        a(f"s_add_u32 s{sT0}, s{sT0}, 32")
        a(f"s_and_b32 s{sT1}, s{sC}, 1")
        a(f"s_add_u32 s{sN+1}, s{sT0}, s{sT1}")
        a(f"s_add_u32 s{sN+2}, s{sN+1}, 1")
        a(f"s_xor_b32 s{sT1}, s{sT1}, 1")
        a(f"s_lshl_b32 s{sT1}, s{sT1}, 1")
        a(f"s_add_u32 s{sN}, s{sT0}, s{sT1}")
        a(f"s_lshl_b32 s{sN+3}, s{sC}, 2")
        for t in range(1, 4):
            a(f"s_add_u32 s{sN+3+t}, s{sN+3}, {t}")
        for r in range(8):
            a(f"s_add_u32 s{sT0}, s{sC}, {r}")
            a(f"s_and_b32 s{sT0}, s{sT0}, 7")
            a(f"s_lshl_b32 s{sROT+r}, s{sT0}, 11")
        a(f"s_lshl_b32 s{sSP}, s{sRB64}, 18")
        a(f"s_lshl_b32 s{sT0}, s{sWV}, 10")
        a(f"s_add_u32 s{sSP}, s{sSP}, s{sT0}")

    def norm_tiles(self, acc, cs, dst):
        a = self.a
        for t in range(2):
            for m in range(2):
                r = acc + 8*t + 4*m
                for h in range(2):
                    a(f"v_pk_fma_f32 {V(r+2*h,2)}, {V(cs+4*t+2*h,2)}, {V(vST+2*m,2)}, {V(r+2*h,2)} op_sel_hi:[1,0,1]")
        for t in range(2):
            for m in range(2):
                r = acc + 8*t + 4*m
                for h in range(2):
                    a(f"v_pk_mul_f32 {V(r+2*h,2)}, {V(r+2*h,2)}, {V(vST+2*m,2)} op_sel:[0,1] op_sel_hi:[1,1]")
        for t in range(2):
            for m in range(2):
                r = acc + 8*t + 4*m
                for h in range(2):
                    a(f"v_cvt_pk_bf16_f32 v{dst+2*(2*t+m)+h}, v{r+2*h}, v{r+2*h+1}")

    def softmax(self, kb, wphi, p, ep, red):
        a = self.a
        for u in range(4):
            a(f"v_mfma_f32_16x16x16_bf16 {V(p+4*u,4)}, {V(wphi+2*(u>>1),2)}, {V(kb+2*u,2)}, 0")
        for u in range(4):
            r = p + 4*u
            a(f"v_max3_f32 v{red+2*u}, v{r}, v{r+1}, v{r+2}")
            a(f"v_max3_f32 v{red+2*u+1}, -v{r}, -v{r+1}, -v{r+2}")
        for u in range(4):
            r = p + 4*u
            a(f"v_max_f32 v{red+2*u}, v{red+2*u}, v{r+3}")
            a(f"v_max_f32_e64 v{red+2*u+1}, v{red+2*u+1}, -v{r+3}")
        g0 = [red, red+1, red+2, red+3]; g1 = [red+4, red+5, red+6, red+7]
        self.red4("v_max_f32", g0, g0[0]); self.red4("v_max_f32", g1, g1[0])
        a(f"v_mul_f32 v{g0[0]}, s{sL}, v{g0[0]}")
        a(f"v_mul_f32 v{g1[0]}, s{sL}, v{g1[0]}")
        self.bc4(g0); self.bc4(g1)
        for u in range(4):
            for h in range(2):
                a(f"v_pk_fma_f32 {V(ep+4*u+2*h,2)}, {V(p+4*u+2*h,2)}, {S(sL,2)}, {V(red+2*u,2)} op_sel_hi:[1,1,0] neg_lo:[0,0,1] neg_hi:[0,0,1]")
            for h in range(2):
                a(f"v_pk_fma_f32 {V(p+4*u+2*h,2)}, {V(p+4*u+2*h,2)}, {S(sL,2)}, {V(red+2*u,2)} op_sel:[0,0,1] op_sel_hi:[1,1,1] neg_lo:[1,0,1] neg_hi:[1,0,1]")
        for k in range(16):
            a(f"v_exp_f32 v{ep+k}, v{ep+k}")
            a(f"v_exp_f32 v{p+k}, v{p+k}")
        for u in range(4):
            a(f"v_add_f32 v{red+2*u}, v{ep+4*u}, v{ep+4*u+1}")
            a(f"v_add_f32 v{red+2*u+1}, v{p+4*u}, v{p+4*u+1}")
        for k in (2, 3):
            for u in range(4):
                a(f"v_add_f32 v{red+2*u}, v{red+2*u}, v{ep+4*u+k}")
                a(f"v_add_f32 v{red+2*u+1}, v{red+2*u+1}, v{p+4*u+k}")
        self.red4("v_add_f32", g0, g0[0]); self.red4("v_add_f32", g1, g1[0])
        a(f"v_rcp_f32 v{g0[0]}, v{g0[0]}")
        a(f"v_rcp_f32 v{g1[0]}, v{g1[0]}")
        self.bc4(g0); self.bc4(g1)
        for u in range(4):
            for h in range(2):
                a(f"v_pk_mul_f32 {V(ep+4*u+2*h,2)}, {V(ep+4*u+2*h,2)}, {V(red+2*u,2)} op_sel_hi:[1,0]")
                a(f"v_pk_mul_f32 {V(p+4*u+2*h,2)}, {V(p+4*u+2*h,2)}, {V(red+2*u,2)} op_sel:[0,1] op_sel_hi:[1,1]")

    def p1(self):
        a = self.a
        vA = 128; vCS = 40; vONES = 24; vID = 32; vWP = 34
        for k in range(4):
            a(f"v_mov_b32 v{28+k}, -1")
        a(f"s_lshl_b32 s{sT0}, s2, 13")
        a(f"s_lshl_b32 s{sT1}, s{sWV}, 11")
        a(f"s_add_u32 s{sT0}, s{sT0}, s{sT1}")
        a(f"s_add_u32 s{sT0}, s{sT0}, {CLR_OFF}")
        a(f"buffer_store_dwordx4 {V(28,4)}, v{vL16}, {srd(sWS)}, s{sT0} offen sc1")
        a(f"buffer_store_dwordx4 {V(28,4)}, v{vL16}, {srd(sWS)}, s{sT0} offen offset:1024 sc1")
        rpg = self.dma_voffs('pairN', 3072, 19, 20)
        a(f"s_lshl_b32 s{sT0}, s{sP}, 6")
        a(f"s_add_u32 s{sT1}, s{sT0}, 1024")
        self.dma_image(sWQKV, 3072, rpg, sT1, RK, 0, 8)
        a(f"s_add_u32 s{sT1}, s{sT0}, 2048")
        tkv = self.dma_image(sWQKV, 3072, rpg, sT1, RV, 0, 8)
        self.stg_voffs(1024, 19, 20)
        def xround(r):
            a(f"s_lshl_b32 s{sSO}, s{sKB}, 15")
            if r:
                a(f"s_add_u32 s{sSO}, s{sSO}, {512*r}")
            a(f"s_lshl_b32 m0, s{sWV}, 14")
            toks = []
            for b in range(4):
                if b:
                    a(f"s_add_u32 s{sSO}, s{sSO}, 128")
                    a(f"s_add_u32 m0, m0, 4096")
                toks.append(self.dma_group(vSTG, sX_))
            return toks
        tx0 = xround(0)
        a(f"v_lshlrev_b32 v19, 7, v{vG}")
        a(f"v_lshl_add_u32 v19, v{vI}, 1, v19")
        a(f"s_lshl_b32 s{sT1}, s{sP}, 10")
        for t in range(2):
            for j in range(4):
                a(f"buffer_load_ushort v{56+4*t+j}, v19, {srd(sWPHI)}, s{sT1} offen offset:{512*t+32*j}")
        for k in range(4):
            a(f"v_mov_b32 v{vONES+k}, 0x3f803f80")
        a(f"v_lshlrev_b32 v19, 2, v{vG}")
        a(f"v_sub_u32 v19, v{vI}, v19")
        a(f"v_mov_b32 v20, 0x3f80")
        a(f"v_mov_b32 v21, 0x3f800000")
        for h in range(2):
            a(f"v_cmp_eq_u32 vcc, {2*h}, v19")
            a(f"v_cndmask_b32 v{vID+h}, 0, v20, vcc")
            a(f"v_cmp_eq_u32 vcc, {2*h+1}, v19")
            a(f"v_cndmask_b32 v{vID+h}, v{vID+h}, v21, vcc")
        d2, kst = self.tr_addrs('pairN', vTR, RK, 19, 20)
        self.stg_rdaddr(R0, 16384, 19)
        a.wait(tkv)
        a("s_barrier")
        self.ts("w_ready")
        def arrive():
            a(f"s_getreg_b32 s{sT0}, hwreg(HW_REG_XCC_ID)")
            a(f"s_and_b32 s{sT0}, s{sT0}, 7")
            a(f"s_lshl_b32 s{sT0}, s{sT0}, 3")
            a(f"s_mov_b64 {S(sT1,2)}, 1")
            a(f"s_lshl_b64 {S(sT1,2)}, {S(sT1,2)}, s{sT0}")
            a(f"v_mov_b32 v20, s{sT1}")
            a(f"v_mov_b32 v21, s{sT2}")
            a(f"s_lshl_b32 s{sT0}, s{sXC}, 5")
            a("s_mov_b64 exec, 1")
            a(f"buffer_atomic_add_x2 {V(20,2)}, off, {srd(sDBG)}, s{sT0}")
            a("s_mov_b64 exec, -1")
        assert sT1 % 2 == 0
        a.ifonly(f"s_cmp_lg_u32 s{sWV}, 0", arrive)
        items = []
        for ks in range(16):
            for u in range(4):
                c = V(vCS+4*u, 4) if ks else "0"
                items.append((vTR + (u & 1), ks*kst + (u >> 1)*32768, d2,
                              [f"v_mfma_f32_16x16x32_bf16 {V(vCS+4*u,4)}, {{b}}, {V(vONES,4)}, {c}"]))
        self.gemm(items, 96, 8, 6, 2)
        for t in range(2):
            for h in range(2):
                a(f"v_lshl_or_b32 v{vWP+2*t+h}, v{56+4*t+2*h+1}, 16, v{56+4*t+2*h}")
        def xread(r, toks):
            for b in range(4):
                a.wait(toks[b])
                for k2 in range(2):
                    for m in range(2):
                        ks = 8*r + 2*b + k2
                        a(f"ds_read_b128 {V(vA+8*ks+4*m,4)}, v{vRDA+k2} offset:{b*4096+m*2048}")
        xread(0, tx0)
        a("s_waitcnt lgkmcnt(0)")
        tx1 = xround(1)
        a(f"s_lshl_b32 s{sT0}, s{sP}, 6")
        tq = self.dma_image(sWQKV, 3072, rpg, sT0, RQ, 0, 8)
        for k in range(4):
            a(f"v_mov_b32 v{28+k}, 0")
        def stats(r):
            for ks in range(8*r, 8*r+8):
                for k in range(4):
                    for m in range(2):
                        x = vA + 8*ks + 4*m + k
                        a(f"v_dot2c_f32_bf16 v{28+2*m}, v{x}, v{vONES}")
                        a(f"v_dot2c_f32_bf16 v{29+2*m}, v{x}, v{x}")
        def kvgemm(r):
            items = []
            for ks in range(8*r, 8*r+8):
                for u in range(4):
                    ms = []
                    for m in range(2):
                        d = V(64+8*u+4*m, 4)
                        ms.append(f"v_mfma_f32_16x16x32_bf16 {d}, {{b}}, {V(vA+8*ks+4*m,4)}, {d if ks else 0}")
                    items.append((vTR + (u & 1), ks*kst + (u >> 1)*32768, d2, ms))
            self.gemm(items, 96, 8, 5, 2)
        stats(0)
        kvgemm(0)
        self.ts("kv_half")
        xread(1, tx1)
        a("s_waitcnt lgkmcnt(0)")
        rpg = self.dma_voffs('quad', 1024, 19, 20)
        a(f"s_lshl_b32 s{sT0}, s{sC}, 7")
        self.two = self.dma_image(sWO, 1024, rpg, sT0, R0, 0, 16)
        stats(1)
        kvgemm(1)
        self.ts("kv_gemm")
        g = [28, 29, 30, 31]
        self.red4("v_add_f32", g, 28)
        self.bc4(g)
        for m in range(2):
            a(f"v_mul_f32 v{vST+2*m}, {FH(-1.0/512)}, v{28+2*m}")
            a(f"v_mul_f32 v{29+2*m}, {FH(1.0/512)}, v{29+2*m}")
        for m in range(2):
            a(f"v_fma_f32 v{29+2*m}, -v{vST+2*m}, v{vST+2*m}, v{29+2*m}")
        for m in range(2):
            a(f"v_max_f32 v{29+2*m}, 0, v{29+2*m}")
        for m in range(2):
            a(f"v_add_f32 v{29+2*m}, {FH(1e-5)}, v{29+2*m}")
        for m in range(2):
            a(f"v_rsq_f32 v{vST+2*m+1}, v{29+2*m}")
        self.norm_tiles(80, vCS+8, 96)
        for u in range(4):
            a(f"v_mfma_f32_16x16x16_bf16 {V(80+4*u,4)}, {V(96+2*u,2)}, {V(vID,2)}, 0")
        self.norm_tiles(64, vCS, 112)
        for u in range(4):
            for h in range(2):
                a(f"v_cvt_pk_bf16_f32 v{104+2*u+h}, v{80+4*u+2*h}, v{80+4*u+2*h+1}")
        self.softmax(112, vWP, 64, 80, 120)
        for base in (80, 64):
            for u in range(4):
                for h in range(2):
                    a(f"v_cvt_pk_bf16_f32 v{base+4*u+h}, v{base+4*u+2*h}, v{base+4*u+2*h+1}")
        for u in range(4):
            a(f"v_mfma_f32_16x16x16_bf16 {V(40+4*u,4)}, {V(80+4*u,2)}, {V(vID,2)}, 0")
            a(f"v_mfma_f32_16x16x16_bf16 {V(112+4*u,4)}, {V(64+4*u,2)}, {V(vID,2)}, 0")
        for sg, base in ((0, 40), (1, 112)):
            for t in range(2):
                for m in range(2):
                    for h in range(2):
                        r = base + 4*(2*t+m) + 2*h
                        a(f"v_cvt_pk_bf16_f32 v{64+4*(2*t+sg)+2*m+h}, v{r}, v{r+1}")
        for qd in range(4):
            a(f"v_mfma_f32_16x16x32_bf16 {V(80+4*qd,4)}, {V(64+4*qd,4)}, {V(104+4*(qd>>1),4)}, 0")
            a(f"v_mfma_f32_16x16x32_bf16 {V(112+4*qd,4)}, {V(64+4*qd,4)}, {V(vONES,4)}, 0")
        self.ts("k_epi")
        def check():
            lp = a.label('Linit'); ld = a.label('Linitd')
            a(f"v_and_b32 v19, 7, v{vLANE}")
            a(f"v_lshlrev_b32 v19, 5, v19")
            a(f"{lp}:")
            a(f"buffer_load_dwordx2 {V(40,2)}, v19, {srd(sDBG)}, 0 offen sc1")
            a(f"s_sub_u32 s{sSPIN}, s{sSPIN}, 1")
            a(f"s_cbranch_scc1 {ld}")
            a(f"v_sad_u8 v42, v40, 0, 0")
            a(f"v_sad_u8 v42, v41, 0, v42")
            a(f"v_cmp_gt_u32 vcc, 32, v42")
            a(f"s_cbranch_vccnz {lp}")
            a(f"{ld}:")
            a(f"s_max_i32 s{sSPIN}, s{sSPIN}, 0")
            a("s_waitcnt vmcnt(0)")
            a(f"v_or_b32 v40, v40, v41")
            a(f"v_and_b32 v40, 0x20202020, v40")
            a(f"v_readlane_b32 s{sT0}, v40, s{sXC}")
            a(f"s_cmp_eq_u32 s{sT0}, 0")
            a(f"s_cselect_b32 s{sMODE}, 1, 0")
        a.ifonly(f"s_cmp_lg_u32 s{sWV}, 0", check)
        a.wait(tq)
        self.barrier()
        a(f"s_lshl_b32 s{sT0}, s{sWV}, 12")
        a(f"s_add_u32 s{sT0}, s{sT0}, {SCR}")
        a(f"v_add_u32 v19, s{sT0}, v{vL16}")
        for qd in range(4):
            a(f"ds_write_b128 v19, {V(80+4*qd,4)} offset:{qd*1024}")
        a(f"s_lshl_b32 s{sT0}, s{sWV}, 8")
        a(f"s_add_u32 s{sT0}, s{sT0}, {SCR+16384}")
        a(f"v_lshl_add_u32 v38, v{vG}, 4, s{sT0}")
        a(f"s_mov_b32 exec_lo, 0x00010001")
        a(f"s_mov_b32 exec_hi, 0x00010001")
        for qd in range(4):
            a(f"ds_write_b128 v38, {V(112+4*qd,4)} offset:{qd*64}")
        a("s_mov_b64 exec, -1")
        a(f"v_mov_b32 v38, {SCR+17408}")
        a(f"v_mov_b32 v39, s{sMODE}")
        a.ifonly(f"s_cmp_lg_u32 s{sWV}, 0", lambda: a(f"ds_write_b32 v38, v39"))
        self.barrier()
        a(f"ds_read_b32 v39, v38")
        a(f"s_lshl_b32 s{sT0}, s{sWV}, 10")
        a(f"s_add_u32 s{sT0}, s{sT0}, {SCR}")
        a(f"v_add_u32 v19, s{sT0}, v{vL16}")
        for w in range(4):
            a(f"ds_read_b128 {V(80+4*w,4)}, v19 offset:{w*4096}")
        a(f"s_lshl_b32 s{sT0}, s{sWV}, 6")
        a(f"s_add_u32 s{sT0}, s{sT0}, {SCR+16384}")
        a(f"v_lshl_add_u32 v38, v{vG}, 4, s{sT0}")
        for w in range(4):
            a(f"ds_read_b128 {V(112+4*w,4)}, v38 offset:{w*256}")
        a(f"v_readfirstlane_b32 s{sMODE}, v39")
        if self.force_slow:
            a(f"s_mov_b32 s{sMODE}, 1")
        for base in (80, 112):
            for h in range(2):
                a(f"v_pk_add_f32 {V(base+2*h,2)}, {V(base+2*h,2)}, {V(base+4+2*h,2)}")
                a(f"v_pk_add_f32 {V(base+8+2*h,2)}, {V(base+8+2*h,2)}, {V(base+12+2*h,2)}")
            for h in range(2):
                a(f"v_pk_add_f32 {V(base+2*h,2)}, {V(base+2*h,2)}, {V(base+8+2*h,2)}")
        a(f"s_lshl_b32 s{sT0}, s{sP}, 2")
        a(f"s_add_u32 s{sT0}, s{sT0}, s{sWV}")
        a(f"s_lshl_b32 s{sT0}, s{sT0}, 4")
        a(f"s_add_u32 s{sT1}, s{sT0}, s{sRB}")
        a(f"s_lshl_b32 s{sT2}, s{sT1}, 10")
        a(f"s_add_u32 s{sT2}, s{sT2}, {KV_OFF}")
        a(f"buffer_store_dwordx4 {V(80,4)}, v{vL16}, {srd(sWS)}, s{sT2} offen sc1")
        a(f"s_lshl_b32 s{sT2}, s{sT1}, 6")
        a(f"s_add_u32 s{sT2}, s{sT2}, {KVZ_OFF}")
        a(f"v_lshlrev_b32 v38, 4, v{vG}")
        a(f"s_mov_b32 exec_lo, 0x00010001")
        a(f"s_mov_b32 exec_hi, 0x00010001")
        a(f"buffer_store_dwordx4 {V(112,4)}, v38, {srd(sWS)}, s{sT2} offen sc1")
        a("s_mov_b64 exec, -1")
        self.ts("kv_pub")
        a(f"v_add_u32 v{vTR}, {RQ-RK}, v{vTR}")
        a(f"v_add_u32 v{vTR+1}, {RQ-RK}, v{vTR+1}")
        items = []
        for ks in range(16):
            for t in range(2):
                ms = []
                for m in range(2):
                    d = V(64+8*t+4*m, 4)
                    ms.append(f"v_mfma_f32_16x16x32_bf16 {d}, {{b}}, {V(vA+8*ks+4*m,4)}, {d if ks else 0}")
                d = V(vCS+4*t, 4)
                ms.append(f"v_mfma_f32_16x16x32_bf16 {d}, {{b}}, {V(vONES,4)}, {d if ks else 0}")
                items.append((vTR + t, ks*kst, d2, ms))
        self.gemm(items, 84, 6, 4, 2)
        self.ts("q_gemm")
        self.norm_tiles(64, vCS, 112)
        self.softmax(112, vWP, 64, 80, 120)
        for u in range(4):
            for h in range(2):
                a(f"v_cvt_pk_bf16_f32 v{96+4*u+h}, v{80+4*u+2*h}, v{80+4*u+2*h+1}")
                a(f"v_cvt_pk_bf16_f32 v{96+4*u+2+h}, v{64+4*u+2*h}, v{64+4*u+2*h+1}")
        self.ts("q_epi")
        lp = a.label('Lkv'); ld = a.label('Lkvd')
        a(f"v_lshlrev_b32 v38, 4, v{vG}")
        a(f"v_lshl_add_u32 v38, v{vI}, 6, v38")
        a(f"s_lshl_b32 s{sT1}, s{sT0}, 6")
        a(f"s_add_u32 s{sT1}, s{sT1}, {KVZ_OFF}")
        a(f"s_lshl_b32 s{sT0}, s{sT0}, 10")
        a(f"s_add_u32 s{sT0}, s{sT0}, {KV_OFF}")
        a(f"{lp}:")
        a(f"buffer_load_dwordx4 {V(192,4)}, v38, {srd(sWS)}, s{sT1} offen sc1")
        a(f"s_mov_b32 s{sT2}, s{sT0}")
        for rb in range(16):
            if rb and rb % 4 == 0:
                a(f"s_add_u32 s{sT2}, s{sT2}, 4096")
            a(f"buffer_load_dwordx4 {V(128+4*rb,4)}, v{vL16}, {srd(sWS)}, s{sT2} offen offset:{(rb%4)*1024} sc1")
        a(f"s_sub_u32 s{sSPIN}, s{sSPIN}, 16")
        a(f"s_cbranch_scc1 {ld}")
        a(f"v_max_u32 v39, v192, v193")
        a(f"v_max3_u32 v39, v39, v194, v195")
        for k in range(32):
            a(f"v_max3_u32 v39, v39, v{128+2*k}, v{129+2*k}")
        a(f"v_cmp_eq_u32 vcc, -1, v39")
        a(f"s_cbranch_vccnz {lp}")
        a(f"{ld}:")
        a(f"s_max_i32 s{sSPIN}, s{sSPIN}, 0")
        a("s_waitcnt vmcnt(0)")
        n = 16
        while n > 1:
            n //= 2
            for k in range(n):
                for h in range(2):
                    a(f"v_pk_add_f32 {V(128+4*k+2*h,2)}, {V(128+4*k+2*h,2)}, {V(128+4*(k+n)+2*h,2)}")
        for rot in (8, 4, 2, 1):
            for k in range(4):
                a(f"v_add_f32_dpp v{192+k}, v{192+k}, v{192+k} row_ror:{rot} row_mask:0xf bank_mask:0xf")
        for h in range(2):
            a(f"v_cvt_pk_bf16_f32 v{128+h}, v{128+2*h}, v{129+2*h}")
        for h in range(2):
            a(f"v_cvt_pk_bf16_f32 v{130+h}, v{192+2*h}, v{193+2*h}")
        self.ts("kv_gath")
        a(f"s_lshl_b32 s{sT0}, s{sWV}, 10")
        a(f"s_add_u32 s{sT0}, s{sT0}, {RK}")
        a(f"v_add_u32 v19, s{sT0}, v{vL16}")
        a(f"ds_write_b128 v19, {V(128,4)}")
        self.barrier()
        a(f"v_add_u32 v19, {RK}, v{vL16}")
        for t in range(2):
            for sg in range(2):
                a(f"ds_read_b64 {V(132+4*t+2*sg,2)}, v19 offset:{(2*t+sg)*1024}")
                a(f"ds_read_b64 {V(140+4*t+2*sg,2)}, v19 offset:{(2*t+sg)*1024+8}")
        for u in range(4):
            a(f"v_mfma_f32_16x16x32_bf16 {V(80+4*u,4)}, {V(140+4*(u>>1),4)}, {V(96+4*u,4)}, 0")
        for u in range(4):
            a(f"v_mfma_f32_16x16x32_bf16 {V(64+4*u,4)}, {V(132+4*(u>>1),4)}, {V(96+4*u,4)}, 0")
        for u in range(4):
            a(f"v_add_f32 v{80+4*u}, {FH(1e-6)}, v{80+4*u}")
        for u in range(4):
            a(f"v_rcp_f32 v{80+4*u}, v{80+4*u}")
        for u in range(4):
            for h in range(2):
                a(f"v_pk_mul_f32 {V(64+4*u+2*h,2)}, {V(64+4*u+2*h,2)}, {V(80+4*u,2)} op_sel_hi:[1,0]")
        for t in range(2):
            for m in range(2):
                for h in range(2):
                    r = 64 + 4*(2*t+m) + 2*h
                    a(f"v_cvt_pk_bf16_f32 v{112+4*m+2*t+h}, v{r}, v{r+1}")
        a(f"s_lshl_b32 s{sT0}, s{sKB}, 15")
        a(f"s_lshl_b32 s{sT1}, s{sP}, 10")
        a(f"s_add_u32 s{sT0}, s{sT0}, s{sT1}")
        a(f"s_add_u32 s{sT1}, s{sT0}, {O_OFF+16384}")
        if O_OFF:
            a(f"s_add_u32 s{sT0}, s{sT0}, {O_OFF}")
        self.lst(f"buffer_store_dwordx4 {V(112,4)}, v{vL16}, {srd(sWS)}, s{sT0} offen\n"
                 f"buffer_store_dwordx4 {V(116,4)}, v{vL16}, {srd(sWS)}, s{sT1} offen")
        a(f"s_lshl_b32 s{sT0}, s{sKB}, 7")
        a(f"s_lshl_b32 s{sT1}, s{sP}, 2")
        a(f"s_add_u32 s{sT0}, s{sT0}, s{sT1}")
        a(f"s_add_u32 s{sT0}, s{sT0}, {F2_OFF}")
        self.flag(sT0)
        self.ts("o_pub")

    def win_part(self, first):
        a = self.a
        base = R1F if first else R0
        colb = 1792 if first else 0
        def quad():
            rpg = self.dma_voffs('quad', 3584, 19, 38)
            a(f"s_lshl_b32 s{sT0}, s{sN+3}, 5")
            if colb:
                a(f"s_add_u32 s{sT0}, s{sT0}, {colb}")
            return self.dma_image(sWIN, 3584, rpg, sT0, base, 0, 16)
        def triple():
            rpg = self.dma_voffs('pairP', 3584, 19, 38)
            a(f"s_lshl_b32 s{sT0}, s{sN+1}, 5")
            if colb:
                a(f"s_add_u32 s{sT0}, s{sT0}, {colb}")
            self.dma_image(sWIN, 3584, rpg, sT0, base, 0, 8)
            rpg = self.dma_voffs('single', 3584, 19, 38)
            a(f"s_lshl_b32 s{sT0}, s{sN}, 5")
            if colb:
                a(f"s_add_u32 s{sT0}, s{sT0}, {colb}")
            return self.dma_image(sWIN, 3584, rpg, sT0, base + 32768, 0, 4)
        if first:
            return a.ifelse(f"s_bitcmp1_b32 s{sP}, 0", quad, triple)
        return a.ifelse(f"s_bitcmp1_b32 s{sP}, 0", triple, quad)

    def wsp_setup(self):
        self.stg_voffs(4096, 19, 38)
        self.stg_rdaddr(STG, 8192, 19)

    def wsp_issue(self, r):
        a = self.a
        a(f"s_lshr_b32 s{sSO}, s{sROT+r}, 4")
        a(f"s_add_u32 s{sSO}, s{sSO}, s{sSP}")
        a(f"s_lshl_b32 s{sT4}, s{sWV}, 13")
        a(f"s_add_u32 m0, s{sT4}, {STG}")
        self.dma_group(vSTG, sWSP)
        a(f"s_add_u32 s{sSO}, s{sSO}, {32*4096}")
        a(f"s_add_u32 m0, m0, 4096")
        return self.dma_group(vSTG, sWSP)

    def wsp_read(self, r, tok):
        a = self.a
        a.wait(tok)
        t = None
        for k2 in range(2):
            for mt in range(4):
                t = a(f"ds_read_b128 {A(32*r+16*k2+4*mt,4)}, v{vRDA+k2} offset:{(mt>>1)*4096+(mt&1)*2048}")
        return t

    def rowoff(self, dst, t0):
        a = self.a
        a(f"v_lshrrev_b32 v{t0}, 2, v{vI}")
        a(f"v_lshlrev_b32 v{t0}, 3, v{t0}")
        a(f"v_and_or_b32 v{t0}, v{vI}, 3, v{t0}")
        a(f"s_lshr_b32 s{sT3}, s{sMT}, 1")
        a(f"s_lshl_b32 s{sT3}, s{sT3}, 5")
        a(f"s_and_b32 s{sT4}, s{sMT}, 1")
        a(f"s_lshl_b32 s{sT4}, s{sT4}, 2")
        a(f"s_add_u32 s{sT3}, s{sT3}, s{sT4}")
        a(f"v_add_u32 v{dst}, s{sT3}, v{t0}")

    def p2a(self):
        a = self.a
        vA = 128; acc = 64
        self.barrier()
        self.twin1 = self.win_part(True)
        self.wsp_setup()
        self.rowoff(38, 19)
        a(f"v_lshlrev_b32 v38, 10, v38")
        a(f"v_lshl_add_u32 v38, v{vG}, 3, v38")
        a(f"s_lshl_b32 s{sT0}, s{sC}, 7")
        for t in range(4):
            a(f"buffer_load_dwordx2 {V(vH+2*t,2)}, v38, {srd(sX_)}, s{sT0} offen offset:{32*t}")
        d2, kst = self.tr_addrs('quad', vTR, R0, 19, 38)
        a(f"s_lshr_b32 s{sT0}, s{sMT}, 1")
        a(f"s_lshl_b32 s{sT0}, s{sT0}, 7")
        a(f"s_add_u32 s{sT0}, s{sT0}, {F2_OFF}")
        a(f"v_lshl_add_u32 v38, v{vI}, 2, s{sT0}")
        self.poll(38, 39, 1)
        self.ts("o_rdy")
        a(f"s_lshl_b32 s{sT0}, s{sMT}, 14")
        if O_OFF:
            a(f"s_add_u32 s{sT0}, s{sT0}, {O_OFF}")
        for ks in range(16):
            if ks and ks % 4 == 0:
                a(f"s_add_u32 s{sT0}, s{sT0}, 4096")
            a(f"buffer_load_dwordx4 {V(vA+4*ks,4)}, v{vL16}, {srd(sWS)}, s{sT0} offen offset:{(ks%4)*1024} sc1")
        items = []
        for ks in range(16):
            for t in range(4):
                d = V(acc+4*t, 4)
                items.append((vTR + t, ks*kst, d2, [f"v_mfma_f32_16x16x32_bf16 {d}, {{b}}, {V(vA+4*ks,4)}, {d if ks else 0}"]))
        self.gemm(items, 192, 12, 7, 4)
        self.ts("h_gemm")
        for t in range(4):
            for h in range(2):
                a(f"v_lshlrev_b32 v{80+4*t+2*h}, 16, v{vH+2*t+h}")
                a(f"v_and_b32 v{81+4*t+2*h}, 0xffff0000, v{vH+2*t+h}")
        for k in range(8):
            a(f"v_pk_add_f32 {V(acc+2*k,2)}, {V(acc+2*k,2)}, {V(80+2*k,2)}")
        a(f"v_pk_add_f32 {V(80,2)}, {V(acc,2)}, {V(acc+2,2)}")
        a(f"v_pk_mul_f32 {V(82,2)}, {V(acc,2)}, {V(acc,2)}")
        a(f"v_pk_fma_f32 {V(82,2)}, {V(acc+2,2)}, {V(acc+2,2)}, {V(82,2)}")
        for k in range(2, 8):
            a(f"v_pk_add_f32 {V(80,2)}, {V(80,2)}, {V(acc+2*k,2)}")
            a(f"v_pk_fma_f32 {V(82,2)}, {V(acc+2*k,2)}, {V(acc+2*k,2)}, {V(82,2)}")
        a(f"v_add_f32 v80, v80, v81")
        a(f"v_add_f32 v81, v82, v83")
        self.allred2(80, 81, 82)
        a(f"v_max_f32 v81, 0, v81")
        a(f"s_lshl_b32 s{sT0}, s{sMT}, 10")
        a(f"s_add_u32 s{sT0}, s{sT0}, {ST1_OFF}")
        a(f"s_lshl_b32 s{sT1}, s{sC}, 3")
        a(f"s_add_u32 s{sT1}, s{sT1}, s{sT0}")
        a(f"v_lshlrev_b32 v38, 6, v{vI}")
        a(f"s_mov_b64 exec, 0xffff")
        self.lst(f"buffer_store_dwordx2 {V(80,2)}, v38, {srd(sWS)}, s{sT1} offen")
        a(f"s_mov_b64 exec, -1")
        a(f"v_lshl_add_u32 v38, v{vG}, 4, v38")
        for k in range(8):
            a(f"v_cvt_pk_bf16_f32 v{vH+k}, v{acc+2*k}, v{acc+2*k+1}")
        lp = a.label('Lst1'); ld = a.label('Lst1d')
        a(f"{lp}:")
        a(f"buffer_load_dwordx4 {V(84,4)}, v38, {srd(sWS)}, s{sT0} offen sc1")
        a(f"s_sub_u32 s{sSPIN}, s{sSPIN}, 1")
        a(f"s_cbranch_scc1 {ld}")
        a(f"v_max_u32 v39, v85, v87")
        a(f"v_cmp_eq_u32 vcc, -1, v39")
        a(f"s_cbranch_vccnz {lp}")
        a(f"{ld}:")
        a(f"s_max_i32 s{sSPIN}, s{sSPIN}, 0")
        a("s_waitcnt vmcnt(0)")
        a(f"v_pk_add_f32 {V(80,2)}, {V(84,2)}, {V(86,2)}")
        self.allred2(80, 81, 82)
        self.meanrstd(80, 81, 512)
        for k in range(8):
            a(f"v_pk_fma_f32 {V(acc+2*k,2)}, {V(acc+2*k,2)}, {V(80,2)}, {V(80,2)} op_sel:[0,1,0] op_sel_hi:[1,1,0]")
        for k in range(8):
            a(f"v_cvt_pk_bf16_f32 v{84+k}, v{acc+2*k}, v{acc+2*k+1}")
        a(f"s_lshl_b32 s{sT0}, s{sMT}, 14")
        a(f"s_lshl_b32 s{sT1}, s{sC}, 11")
        a(f"s_add_u32 s{sT0}, s{sT0}, s{sT1}")
        a(f"s_add_u32 s{sT0}, s{sT0}, {HN_OFF}")
        self.lst(f"buffer_store_dwordx4 {V(84,4)}, v{vL16}, {srd(sWS)}, s{sT0} offen\n"
                 f"buffer_store_dwordx4 {V(88,4)}, v{vL16}, {srd(sWS)}, s{sT0} offen offset:1024")
        a(f"s_lshr_b32 s{sT0}, s{sMT}, 1")
        a(f"s_lshl_b32 s{sT0}, s{sT0}, 7")
        a(f"s_and_b32 s{sT1}, s{sMT}, 1")
        a(f"s_lshl_b32 s{sT1}, s{sT1}, 3")
        a(f"s_add_u32 s{sT1}, s{sT1}, s{sC}")
        a(f"s_lshl_b32 s{sT1}, s{sT1}, 2")
        a(f"s_add_u32 s{sT0}, s{sT0}, s{sT1}")
        a(f"s_add_u32 s{sT0}, s{sT0}, {F3_OFF}")
        self.flag(sT0)
        self.ts("hn_pub")

    def allred2(self, x, y, t):
        a = self.a
        a(f"v_permlane32_swap_b32 v{x}, v{y}")
        a(f"v_add_f32 v{x}, v{x}, v{y}")
        a(f"v_mov_b32 v{t}, v{x}")
        a(f"v_permlane16_swap_b32 v{x}, v{t}")
        a(f"v_add_f32 v{x}, v{x}, v{t}")
        a(f"v_mov_b32 v{y}, v{x}")
        a(f"v_permlane32_swap_b32 v{x}, v{y}")

    def meanrstd(self, s, q, n):
        a = self.a
        a(f"v_mul_f32 v{s}, {FH(-1.0/n)}, v{s}")
        a(f"v_mul_f32 v{q}, {FH(1.0/n)}, v{q}")
        a(f"v_fma_f32 v{q}, -v{s}, v{s}, v{q}")
        a(f"v_max_f32 v{q}, 0, v{q}")
        a(f"v_add_f32 v{q}, {FH(1e-5)}, v{q}")
        a(f"v_rsq_f32 v{q}, v{q}")
        a(f"v_mul_f32 v{s}, v{s}, v{q}")

    def gelu(self, r, n, tmp, vC1):
        a = self.a
        for c0 in range(0, n, 16):
            m = min(16, n - c0)
            for k in range(0, m, 2):
                a(f"v_pk_mul_f32 {V(tmp+k,2)}, {V(r+c0+k,2)}, {V(r+c0+k,2)}")
            for k in range(0, m, 2):
                a(f"v_pk_fma_f32 {V(tmp+k,2)}, {V(tmp+k,2)}, {S(sC2,2)}, {V(vC1,2)}")
            for k in range(0, m, 2):
                a(f"v_pk_mul_f32 {V(tmp+k,2)}, {V(tmp+k,2)}, {V(r+c0+k,2)}")
            for k in range(m):
                a(f"v_exp_f32 v{tmp+k}, v{tmp+k}")
            for k in range(0, m, 2):
                a(f"v_pk_add_f32 {V(tmp+k,2)}, {V(tmp+k,2)}, {S(sONE,2)}")
            for k in range(m):
                a(f"v_rcp_f32 v{tmp+k}, v{tmp+k}")
            for k in range(0, m, 2):
                a(f"v_pk_mul_f32 {V(r+c0+k,2)}, {V(r+c0+k,2)}, {V(tmp+k,2)}")

    def p2b(self):
        a = self.a
        vA = 128
        self.barrier()
        self.twin2 = self.win_part(False)
        a(f"v_mov_b32 v32, {FH(self.c1)}")
        a(f"v_mov_b32 v33, {FH(self.c1)}")
        a(f"s_lshl_b32 s{sT0}, s{sKB}, 7")
        a(f"s_add_u32 s{sT0}, s{sT0}, {F3_OFF}")
        a(f"v_lshl_add_u32 v38, v{vI}, 2, s{sT0}")
        self.poll(38, 39, 1)
        self.ts("hn_rdy")
        a(f"s_lshl_b32 s{sT0}, s{sKB}, 15")
        a(f"s_add_u32 s{sT0}, s{sT0}, {HN_OFF}")
        a(f"s_add_u32 s{sT1}, s{sT0}, 16384")
        for ks in range(16):
            if ks and ks % 4 == 0:
                a(f"s_add_u32 s{sT0}, s{sT0}, 4096")
                a(f"s_add_u32 s{sT1}, s{sT1}, 4096")
            for m in range(2):
                a(f"buffer_load_dwordx4 {V(vA+8*ks+4*m,4)}, v{vL16}, {srd(sWS)}, s{sT0+m} offen offset:{(ks%4)*1024} sc1")
        a.ifelse(f"s_bitcmp1_b32 s{sP}, 0", lambda: self.p2b_body(True), lambda: self.p2b_body(False))

    def tileset(self, quad, base):
        if quad:
            d2, kst = self.tr_addrs('quad', vTR, base, 19, 38)
            return [(vTR+t, d2, kst, 3+t) for t in range(4)]
        d2, kst = self.tr_addrs('pairP', vTR, base, 19, 38)
        e2, est = self.tr_addrs('single', vTR+2, base + 32768, 19, 38)
        return [(vTR, d2, kst, 1), (vTR+1, d2, kst, 2), (vTR+2, e2, est, 0)]

    def p2b_body(self, kindA):
        a = self.a
        vA = 128; z2 = 40; ring = 96
        n2 = 4 if kindA else 3
        n1 = 7 - n2
        z1 = z2 + 8*n2
        tiles2 = self.tileset(kindA, R1F)
        items = []
        for ks in range(16):
            for u, (ad, d2, kst, _) in enumerate(tiles2):
                ms = []
                for m in range(2):
                    d = V(z2+8*u+4*m, 4)
                    ms.append(f"v_mfma_f32_16x16x32_bf16 {d}, {V(vA+8*ks+4*m,4)}, {{b}}, {d if ks else 0}")
                items.append((ad, ks*kst, d2, ms))
        self.gemm(items, ring, 8, 5, 2)
        self.ts("z2_gemm")
        self.gelu(z2, 8*n2, ring, 32)
        for k in range(0, 8, 2):
            a(f"v_pk_add_f32 {V(96+k,2)}, {V(z2+k,2)}, {V(z2+8+k,2)}")
            a(f"v_pk_mul_f32 {V(104+k,2)}, {V(z2+k,2)}, {V(z2+k,2)}")
        for u in range(1, n2):
            for k in range(0, 8, 2):
                if u > 1:
                    a(f"v_pk_add_f32 {V(96+k,2)}, {V(96+k,2)}, {V(z2+8*u+k,2)}")
                a(f"v_pk_fma_f32 {V(104+k,2)}, {V(z2+8*u+k,2)}, {V(z2+8*u+k,2)}, {V(104+k,2)}")
        for base in (96, 104):
            for k in range(4):
                a(f"v_add_f32_dpp v{base+k}, v{base+k}, v{base+k} row_ror:8 row_mask:0xf bank_mask:0x3")
            for k in range(4):
                a(f"v_add_f32_dpp v{base+k}, v{base+4+k}, v{base+4+k} row_ror:8 row_mask:0xf bank_mask:0xc")
        for base in (96, 104):
            for k in range(2):
                a(f"v_add_f32_dpp v{base+k}, v{base+k}, v{base+k} row_half_mirror row_mask:0xf bank_mask:0x5")
            for k in range(2):
                a(f"v_add_f32_dpp v{base+k}, v{base+2+k}, v{base+2+k} row_half_mirror row_mask:0xf bank_mask:0xa")
        for qp in ("[1,0,3,2]", "[2,3,0,1]"):
            for r in (96, 97, 104, 105):
                a(f"v_add_f32_dpp v{r}, v{r}, v{r} quad_perm:{qp} row_mask:0xf bank_mask:0xf")
        a(f"v_and_b32 v19, 1, v{vLANE}")
        a(f"v_cmp_eq_u32 vcc, 1, v19")
        a(f"v_cndmask_b32 v96, v96, v97, vcc")
        a(f"v_cndmask_b32 v97, v104, v105, vcc")
        a(f"v_max_f32 v97, 0, v97")
        a(f"v_lshrrev_b32 v38, 2, v{vLANE}")
        a(f"v_lshl_or_b32 v38, v38, 1, v19")
        a(f"v_lshlrev_b32 v38, 7, v38")
        a(f"s_lshl_b32 s{sT0}, s{sKB}, 12")
        a(f"s_lshl_b32 s{sT1}, s{sP}, 3")
        a(f"s_add_u32 s{sT0}, s{sT0}, s{sT1}")
        a(f"s_add_u32 s{sT0}, s{sT0}, {ST2_OFF}")
        a(f"s_mov_b32 exec_lo, 0x33333333")
        a(f"s_mov_b32 exec_hi, 0x33333333")
        self.lst(f"buffer_store_dwordx2 {V(96,2)}, v38, {srd(sWS)}, s{sT0} offen")
        a(f"s_mov_b64 exec, -1")
        self.ts("st2_pub")
        a.wait(*self.twin2)
        self.barrier()
        tiles1 = self.tileset(not kindA, R0)
        items = []
        for ks in range(16):
            for u, (ad, d2, kst, _) in enumerate(tiles1):
                ms = []
                for m in range(2):
                    d = V(z1+8*u+4*m, 4)
                    ms.append(f"v_mfma_f32_16x16x32_bf16 {d}, {{b}}, {V(vA+8*ks+4*m,4)}, {d if ks else 0}")
                items.append((ad, ks*kst, d2, ms))
        self.gemm(items, ring, 8, 5, 2)
        self.ts("z1_gemm")
        a(f"v_lshlrev_b32 v38, 6, v{vLANE}")
        a(f"s_lshl_b32 s{sT0}, s{sKB}, 12")
        a(f"s_add_u32 s{sT0}, s{sT0}, {ST2_OFF}")
        lp = a.label('Lst2'); ld = a.label('Lst2d')
        a(f"{lp}:")
        for k in range(4):
            a(f"buffer_load_dwordx4 {V(128+4*k,4)}, v38, {srd(sWS)}, s{sT0} offen offset:{16*k} sc1")
        a(f"s_sub_u32 s{sSPIN}, s{sSPIN}, 1")
        a(f"s_cbranch_scc1 {ld}")
        a(f"v_max_u32 v39, v129, v131")
        for k in range(1, 4):
            a(f"v_max3_u32 v39, v39, v{129+4*k}, v{131+4*k}")
        a(f"v_cmp_eq_u32 vcc, -1, v39")
        a(f"s_cbranch_vccnz {lp}")
        a(f"{ld}:")
        a(f"s_max_i32 s{sSPIN}, s{sSPIN}, 0")
        a("s_waitcnt vmcnt(0)")
        for k in range(4):
            a(f"v_pk_add_f32 {V(128+2*k,2)}, {V(128+2*k,2)}, {V(136+2*k,2)}")
        for k in range(2):
            a(f"v_pk_add_f32 {V(128+2*k,2)}, {V(128+2*k,2)}, {V(132+2*k,2)}")
        a(f"v_pk_add_f32 {V(128,2)}, {V(128,2)}, {V(130,2)}")
        for r in (128, 129):
            a(f"v_add_f32_dpp v{r}, v{r}, v{r} quad_perm:[1,0,3,2] row_mask:0xf bank_mask:0xf")
        self.meanrstd(128, 129, 896)
        a(f"v_and_b32 v19, 1, v{vLANE}")
        a(f"v_cmp_eq_u32 vcc, 1, v19")
        a(f"v_cndmask_b32 v128, v128, v129, vcc")
        a(f"v_lshlrev_b32 v19, 7, v19")
        a(f"v_lshrrev_b32 v38, 1, v{vLANE}")
        a(f"v_lshl_add_u32 v19, v38, 2, v19")
        a(f"s_lshl_b32 s{sT0}, s{sWV}, 8")
        a(f"s_add_u32 s{sT0}, s{sT0}, {SCR2}")
        a(f"v_add_u32 v19, s{sT0}, v19")
        t = a(f"ds_write_b32 v19, v128")
        a(f"v_lshl_add_u32 v38, v{vG}, 5, s{sT0}")
        a.wait(t)
        for k in range(2):
            a(f"ds_read_b128 {V(132+4*k,4)}, v38 offset:{16*k}")
            a(f"ds_read_b128 {V(140+4*k,4)}, v38 offset:{128+16*k}")
        for u in range(n2):
            for k in range(0, 8, 2):
                a(f"v_pk_fma_f32 {V(z2+8*u+k,2)}, {V(z2+8*u+k,2)}, {V(140+k,2)}, {V(132+k,2)}")
        for u, (_, _, _, ni) in enumerate(tiles2):
            for k in range(4):
                a(f"v_cvt_pk_bf16_f32 v{148+4*u+k}, v{z2+8*u+2*k}, v{z2+8*u+2*k+1}")
            a(f"s_lshl_b32 s{sT0}, s{sN+ni}, 6")
            a(f"s_add_u32 s{sT0}, s{sT0}, s{sKB}")
            a(f"s_lshl_b32 s{sT0}, s{sT0}, 10")
            a(f"s_add_u32 s{sT0}, s{sT0}, {Z2_OFF}")
            a(f"buffer_store_dwordx4 {V(148+4*u,4)}, v{vL16}, {srd(sWS)}, s{sT0} offen sc1")
        a("s_waitcnt vmcnt(0)")
        a("s_barrier")
        def arrive():
            a(f"s_lshl_b32 s{sT0}, s{sC}, 7")
            a(f"s_add_u32 s{sT0}, s{sT0}, {F4_OFF}")
            a(f"v_mov_b32 v19, 1")
            a("s_mov_b64 exec, 1")
            a(f"buffer_atomic_add v19, off, {srd(sWS)}, s{sT0}")
            a("s_mov_b64 exec, -1")
        a.ifonly(f"s_cmp_lg_u32 s{sWV}, 0", arrive)
        self.ts("z2_pub")
        self.gelu(z1, 8*n1, ring, 32)
        a(f"v_lshlrev_b32 v38, 3, v{vLANE}")
        a(f"s_mul_i32 s{sT1}, s{sKB}, {2*56*512}")
        a(f"s_add_u32 s{sT1}, s{sT1}, {Z1_OFF}")
        for u, (_, _, _, ni) in enumerate(tiles1):
            for k in range(4):
                a(f"v_cvt_pk_bf16_f32 v{128+4*u+k}, v{z1+8*u+2*k}, v{z1+8*u+2*k+1}")
            a(f"s_lshl_b32 s{sT0}, s{sN+ni}, 9")
            a(f"s_add_u32 s{sT0}, s{sT0}, s{sT1}")
            a(f"s_add_u32 s{sT2}, s{sT0}, {56*512}")
            self.lst(f"buffer_store_dwordx2 {V(128+4*u,2)}, v38, {srd(sWS)}, s{sT0} offen\n"
                     f"buffer_store_dwordx2 {V(130+4*u,2)}, v38, {srd(sWS)}, s{sT2} offen")
        a(f"s_lshl_b32 s{sT0}, s{sKB}, 7")
        a(f"s_lshl_b32 s{sT1}, s{sP}, 2")
        a(f"s_add_u32 s{sT0}, s{sT0}, s{sT1}")
        a(f"s_add_u32 s{sT0}, s{sT0}, {F4B_OFF}")
        self.flag(sT0)
        self.ts("z1_pub")

    def p3(self):
        a = self.a
        rpg = self.dma_voffs('quad', 1024, 19, 38)
        a(f"s_lshl_b32 s{sT0}, s{sC}, 7")
        self.dma_image(sWOUT, 1024, rpg, sT0, R1F, 0, 12)
        self.twout = self.dma_image(sWOUT, 1024, rpg, sT0, R0, 0, 16, krow0=12*32)
        for r in range(8):
            tok = self.wsp_issue(r)
            t = self.wsp_read(r, tok)
            a.wait(t)
        self.ts("wsp_rdy")
        a(f"s_lshr_b32 s{sT0}, s{sMT}, 1")
        a(f"s_lshl_b32 s{sT0}, s{sT0}, 7")
        a(f"s_lshl_b32 s{sT1}, s{sC}, 3")
        a(f"s_add_u32 s{sT0}, s{sT0}, s{sT1}")
        a(f"s_add_u32 s{sT0}, s{sT0}, {F4B_OFF}")
        a(f"v_and_b32 v38, 1, v{vLANE}")
        a(f"v_lshl_add_u32 v38, v38, 2, s{sT0}")
        self.poll(38, 39, 1)
        vZ1 = 40; vB = 34
        a(f"v_lshlrev_b32 v38, 3, v{vLANE}")
        a(f"s_mul_i32 s{sT1}, s{sMT}, {56*512}")
        a(f"s_add_u32 s{sT1}, s{sT1}, {Z1_OFF}")
        for n in range(7):
            a(f"s_lshl_b32 s{sT0}, s{sN+n}, 9")
            a(f"s_add_u32 s{sT0}, s{sT0}, s{sT1}")
            a(f"buffer_load_dwordx2 {V(vZ1+2*n,2)}, v38, {srd(sWS)}, s{sT0} offen sc1")
        self.rowoff(38, 19)
        a(f"v_lshlrev_b32 v38, 1, v38")
        a(f"buffer_load_ushort v{vB}, v38, {srd(sBSP)}, 0 offen")
        def waitz2():
            a(f"s_lshl_b32 s{sT0}, s{sC}, 7")
            a(f"s_add_u32 s{sT0}, s{sT0}, {F4_OFF}")
            a(f"v_mov_b32 v38, s{sT0}")
            self.poll(38, 39, 31)
        a.ifonly(f"s_cmp_lg_u32 s{sWV}, 0", waitz2)
        self.barrier()
        self.ts("z2_rdy")
        a(f"v_lshlrev_b32 v{vB}, 16, v{vB}")
        ring = 128; acc = 64; vBA = 36; vW = 35; vR = 37; red = 96; vY = 112
        a(f"s_lshl_b32 s{sT0}, s{sWV}, 12")
        a(f"s_add_u32 s{sT0}, s{sT0}, {STG}")
        a(f"v_add_u32 v{vW}, s{sT0}, v{vL16}")
        a(f"s_lshl_b32 s{sT0}, s{sWV}, 10")
        a(f"s_add_u32 s{sT0}, s{sT0}, {STG}")
        a(f"v_add_u32 v{vR}, s{sT0}, v{vL16}")
        a(f"s_lshl_b32 s{sT3}, s{sWV}, 14")
        a(f"s_add_u32 s{sT3}, s{sT3}, {Z2_OFF}")
        a(f"s_mul_i32 s{sT2}, s{sMT}, {28*1024}")
        a(f"s_add_u32 s{sT2}, s{sT2}, {Y_OFF}")
        def setb(n):
            a(f"s_lshl_b32 s{sT0}, s{sN+n}, 16")
            a(f"s_add_u32 s{sT0}, s{sT0}, s{sT3}")
            a(f"v_add_u32 v{vBA}, s{sT0}, v{vL16}")
        def loadb(s):
            a(f"buffer_load_dwordx4 {V(ring+4*s,4)}, v{vBA}, {srd(sWS)}, s{sROT+(s>>1)} offen offset:{(s&1)*1024} sc1")
        def wr(n):
            for mt in range(4):
                a(f"ds_write_b128 v{vW}, {V(acc+16*(n&1)+4*mt,4)} offset:{(n&1)*16384+mt*1024}")
        def rd(n):
            for w in range(4):
                a(f"ds_read_b128 {V(red+4*w,4)}, v{vR} offset:{(n&1)*16384+w*4096}")
        def fin(n):
            for k in range(4):
                a(f"v_add_f32 v{red+k}, v{red+k}, v{red+4+k}")
                a(f"v_add_f32 v{red+8+k}, v{red+8+k}, v{red+12+k}")
            for k in range(4):
                a(f"v_add_f32 v{red+k}, v{red+k}, v{vB}")
            for h in range(2):
                a(f"v_lshlrev_b32 v{red+4+2*h}, 16, v{vZ1+2*n+h}")
                a(f"v_and_b32 v{red+5+2*h}, 0xffff0000, v{vZ1+2*n+h}")
            for k in range(4):
                a(f"v_add_f32 v{red+k}, v{red+k}, v{red+8+k}")
            for k in range(4):
                a(f"v_mul_f32 v{red+k}, v{red+k}, v{red+4+k}")
            half = 0 if n == 0 else (n - 1) & 1
            for h in range(2):
                a(f"v_cvt_pk_bf16_f32 v{vY+2*half+h}, v{red+2*h}, v{red+2*h+1}")
            if n == 0:
                a(f"s_lshr_b32 s{sT0}, s{sN}, 1")
                a(f"s_lshl_b32 s{sT0}, s{sT0}, 10")
                a(f"s_and_b32 s{sT1}, s{sN}, 1")
                a(f"s_lshl_b32 s{sT1}, s{sT1}, 3")
                a(f"s_add_u32 s{sT0}, s{sT0}, s{sT1}")
                a(f"s_add_u32 s{sT0}, s{sT0}, s{sT2}")
                self.lst(f"buffer_store_dwordx2 {V(vY,2)}, v{vL16}, {srd(sWS)}, s{sT0} offen")
            elif half:
                a(f"s_lshr_b32 s{sT0}, s{sN+n}, 1")
                a(f"s_lshl_b32 s{sT0}, s{sT0}, 10")
                a(f"s_add_u32 s{sT0}, s{sT0}, s{sT2}")
                self.lst(f"buffer_store_dwordx4 {V(vY,4)}, v{vL16}, {srd(sWS)}, s{sT0} offen")
        setb(0)
        for s in range(16):
            loadb(s)
        for n in range(7):
            if n < 6:
                setb(n + 1)
            for s in range(16):
                for mt in range(4):
                    d = V(acc+16*(n&1)+4*mt, 4)
                    a(f"v_mfma_f32_16x16x32_bf16 {d}, {V(ring+4*s,4)}, {A(16*s+4*mt,4)}, {d if s else 0}")
                if n < 6:
                    loadb(s)
                if n > 0:
                    if s == 1:
                        wr(n - 1)
                    if s == 5:
                        self.barrier()
                        rd(n - 1)
                    if s == 8:
                        fin(n - 1)
        wr(6)
        self.barrier()
        rd(6)
        fin(6)
        a(f"s_lshl_b32 s{sT0}, s{sMT}, 7")
        a(f"s_lshl_b32 s{sT1}, s{sC}, 2")
        a(f"s_add_u32 s{sT0}, s{sT0}, s{sT1}")
        a(f"s_add_u32 s{sT0}, s{sT0}, {F5_OFF}")
        self.flag(sT0)
        self.ts("y_pub")

    def p4(self):
        a = self.a
        vA = 128; acc = 64
        d2, kst = self.tr_addrs('quad', vTR, R0, 19, 38)
        for t in range(4):
            a(f"v_add_u32 v{40+t}, {R1F}, v{vTR+t}")
        a(f"s_lshl_b32 s{sT0}, s{sMT}, 7")
        a(f"s_add_u32 s{sT0}, s{sT0}, {F5_OFF}")
        a(f"v_and_b32 v38, 7, v{vLANE}")
        a(f"v_lshl_add_u32 v38, v38, 2, s{sT0}")
        self.poll(38, 39, 1)
        self.ts("y_rdy")
        a(f"s_mul_i32 s{sT0}, s{sMT}, {28*1024}")
        a(f"s_add_u32 s{sT0}, s{sT0}, {Y_OFF}")
        for ks in range(28):
            if ks and ks % 4 == 0:
                a(f"s_add_u32 s{sT0}, s{sT0}, 4096")
            a(f"buffer_load_dwordx4 {V(vA+4*ks,4)}, v{vL16}, {srd(sWS)}, s{sT0} offen offset:{(ks%4)*1024} sc1")
        for t in range(4):
            for h in range(2):
                a(f"v_lshlrev_b32 v{acc+4*t+2*h}, 16, v{vH+2*t+h}")
                a(f"v_and_b32 v{acc+4*t+2*h+1}, 0xffff0000, v{vH+2*t+h}")
        items = []
        for ks in range(28):
            for t in range(4):
                d = V(acc+4*t, 4)
                ad, off = (40 + t, ks*kst) if ks < 12 else (vTR + t, (ks-12)*kst)
                items.append((ad, off, d2, [f"v_mfma_f32_16x16x32_bf16 {d}, {{b}}, {V(vA+4*ks,4)}, {d}"]))
        self.gemm(items, 80, 12, 7, 4)
        self.rowoff(38, 19)
        a(f"v_lshlrev_b32 v38, 10, v38")
        a(f"v_lshl_add_u32 v38, v{vG}, 3, v38")
        a(f"s_lshl_b32 s{sT0}, s{sC}, 7")
        for t in range(4):
            for h in range(2):
                a(f"v_cvt_pk_bf16_f32 v{80+2*t+h}, v{acc+4*t+2*h}, v{acc+4*t+2*h+1}")
            a(f"buffer_store_dwordx2 {V(80+2*t,2)}, v38, {srd(sOUT)}, s{sT0} offen offset:{32*t}")
        self.ts("end")

    def build(self):
        a = self.a
        self.setup()
        for name, fn in (('p1', self.p1), ('p2a', self.p2a), ('p2b', self.p2b), ('p3', self.p3), ('p4', self.p4)):
            fn()
            if self.stop == name:
                break
        if self.prof:
            a(f"s_lshl_b32 s{sT0}, s2, 10")
            a(f"s_lshl_b32 s{sT1}, s{sWV}, 8")
            a(f"s_add_u32 s{sT0}, s{sT0}, s{sT1}")
            a(f"s_add_u32 s{sT0}, s{sT0}, {TS_OFF}")
            a(f"v_writelane_b32 v{vTS}, s{sSPIN}, 62")
            a(f"v_writelane_b32 v{vTS}, s{sMODE}, 63")
            a(f"v_lshlrev_b32 v19, 2, v{vLANE}")
            a(f"buffer_store_dword v{vTS}, v19, {srd(sWS)}, s{sT0} offen")
        if self.padfrom:
            for o in self.opt:
                if o.startswith('padxcc'):
                    a(f"s_getreg_b32 s94, hwreg(HW_REG_XCC_ID)")
                    a(f"s_and_b32 s94, s94, 7")
                    a(f"s_cmp_lg_u32 s94, {int(o[6:])}")
                    a(f"s_cbranch_scc1 L_end")
            a("L_pad:")
            a("s_memrealtime s[94:95]")
            a("s_waitcnt lgkmcnt(0)")
            a("s_sub_u32 s94, s94, s96")
            a("s_cmp_lt_u32 s94, 6000")
            a("s_cbranch_scc1 L_pad")
        if self.dbgts:
            def dump():
                a(f"v_readlane_b32 s{sT0}, v{vTS}, 0")
                a(f"v_subrev_u32 v{vTS}, s{sT0}, v{vTS}")
                a(f"v_cmp_lt_u32 vcc, 6, v{vLANE}")
                a(f"v_cndmask_b32_e64 v38, 1, 3, vcc")
                a(f"v_add_u32 v38, v38, v{vLANE}")
                a(f"v_lshlrev_b32 v38, 2, v38")
                a(f"s_mov_b64 exec, 0x1ffe")
                a(f"buffer_store_dword v{vTS}, v38, {srd(sDBG)}, 0 offen")
                a(f"s_mov_b64 exec, -1")
            a(f"s_lshl_b32 s{sT0}, s2, 2")
            a(f"s_add_u32 s{sT0}, s{sT0}, s{sWV}")
            a.ifonly(f"s_cmp_lg_u32 s{sT0}, {4*100}", dump)
        a("L_end:")
        a("s_endpgm")
        body = a.finish()
        ref = open('cdna_kernels/' + NAME + '.s.ref').read().split('\n')
        hdr = [l for l in ref if l.startswith(';') and '@launch' not in l]
        k = NAME + "_kernel"
        txt = "\n".join(hdr) + f"\n; @launch grid=(256,1,1) block=(256,1,1) lds={LDS_SIZE}\n"
        txt += '.amdgcn_target "amdgcn-amd-amdhsa--gfx950"\n.text\n'
        txt += f".globl {k}\n.p2align 8\n.type {k},@function\n{k}:\n" + body
        txt += f""".section .rodata,"a"
.p2align 6
.amdhsa_kernel {k}
  .amdhsa_next_free_vgpr 512
  .amdhsa_next_free_sgpr 102
  .amdhsa_accum_offset 256
  .amdhsa_group_segment_fixed_size 0
  .amdhsa_kernarg_size 96
  .amdhsa_user_sgpr_count 2
  .amdhsa_user_sgpr_kernarg_segment_ptr 1
  .amdhsa_system_sgpr_workgroup_id_x 1
.end_amdhsa_kernel
"""
        return txt


if __name__ == "__main__":
    import argparse, json
    ap = argparse.ArgumentParser()
    ap.add_argument('-o', default='cdna_kernels/' + NAME + '.s')
    ap.add_argument('--prof', action='store_true')
    ap.add_argument('--slow', action='store_true')
    ap.add_argument('--stop')
    ap.add_argument('--padfrom')
    ap.add_argument('--dbgts')
    ap.add_argument('--opt', default='')
    args = ap.parse_args()
    g = Gen(padfrom=args.padfrom, prof=args.prof, stop=args.stop, force_slow=args.slow, dbgts=args.dbgts.split(',') if args.dbgts else None, opt=[o for o in args.opt.split(',') if o])
    txt = g.build()
    if args.prof:
        txt = txt.replace("; @launch", "; tsnames " + ",".join(g.tsnames) + "\n; @launch", 1)
    open(args.o, 'w').write(txt)
    print("wrote", args.o, len(txt), "bytes,", txt.count("\n"), "lines")
```

```python
import re

REG_RE = re.compile(r'^(-|abs\()?([vas])(\d+)\)?$')
RANGE_RE = re.compile(r'^(-)?([vas])\[(\d+):(\d+)\]$')

TRANS = ('v_exp_f32', 'v_log_f32', 'v_rcp_f32', 'v_rsq_f32', 'v_sqrt_f32', 'v_sin_f32', 'v_cos_f32', 'v_rcp_iflag_f32')


def regs_of(op):
    op = op.strip()
    m = REG_RE.match(op)
    if m:
        return [(m.group(2), int(m.group(3)))]
    m = RANGE_RE.match(op)
    if m:
        return [(m.group(2), i) for i in range(int(m.group(3)), int(m.group(4)) + 1)]
    if op == 'vcc':
        return [('s', 'vcc')]
    if op == 'exec':
        return [('s', 'exec')]
    if op == 'm0':
        return [('s', 'm0')]
    return []


def R(kind, base, n=1):
    if n == 1:
        return f"{kind}{base}"
    return f"{kind}[{base}:{base + n - 1}]"


def V(b, n=1): return R('v', b, n)
def A(b, n=1): return R('a', b, n)
def S(b, n=1): return R('s', b, n)


class Ins:
    __slots__ = ('text', 'op', 'kind', 'rd', 'wr', 'tok', 'mfma_c', 'mfma_ab', 'passes', 'wide_store', 'states', 'dpp', 'special')

    def __init__(self, text):
        self.text = text
        self.tok = None
        self.special = None
        self.mfma_c = set()
        self.mfma_ab = set()
        self.passes = 0
        self.wide_store = set()
        self.states = 1
        self.dpp = False
        t = text.split(';')[0].strip()
        if t.endswith(':') or t.startswith('.') or not t:
            self.op = ''
            self.kind = 'label' if t.endswith(':') else 'none'
            self.rd = set(); self.wr = set(); self.states = 0
            return
        parts = t.split(None, 1)
        op = parts[0]
        self.op = op
        rest = parts[1] if len(parts) > 1 else ''
        ops = []
        depth = 0; cur = ''
        for ch in rest:
            if ch in '[(':
                depth += 1
            if ch in '])':
                depth -= 1
            if ch == ',' and depth == 0:
                ops.append(cur.strip()); cur = ''
            else:
                cur += ch
        if cur.strip():
            ops.append(cur.strip())
        mods = ''
        if ops:
            last = ops[-1].split(None, 1)
            ops[-1] = last[0]
            mods = last[1] if len(last) > 1 else ''
        rd = []; wr = []
        if op.startswith('v_mfma'):
            self.kind = 'mfma'
            wr = regs_of(ops[0])
            self.mfma_ab = set(regs_of(ops[1]) + regs_of(ops[2]))
            self.mfma_c = set(regs_of(ops[3]))
            rd = list(self.mfma_ab | self.mfma_c)
            self.passes = 8 if '32x32' in op else 4
        elif op.startswith('v_'):
            self.kind = 'valu'
            if op.startswith('v_permlane') and 'swap' in op:
                wr = regs_of(ops[0]) + regs_of(ops[1]); rd = list(wr)
            elif op.startswith('v_cmp'):
                wr = regs_of(ops[0]); rd = [r for o in ops[1:] for r in regs_of(o)]
            elif '_co_' in op:
                wr = regs_of(ops[0]) + regs_of(ops[1]); rd = [r for o in ops[2:] for r in regs_of(o)]
            else:
                wr = regs_of(ops[0]); rd = [r for o in ops[1:] for r in regs_of(o)]
                if op.startswith('v_fmac') or op.startswith('v_dot2c') or op.startswith('v_writelane'):
                    rd += wr
            if '_dpp' in op:
                self.dpp = True
                rd += wr
        elif op.startswith('ds_'):
            self.kind = 'ds'
            if op.startswith('ds_read') or op.startswith('ds_bpermute') or op.startswith('ds_permute') or op.startswith('ds_swizzle'):
                wr = regs_of(ops[0]); rd = [r for o in ops[1:] for r in regs_of(o)]
            else:
                rd = [r for o in ops for r in regs_of(o)]
        elif op.startswith('buffer_') or op.startswith('global_'):
            self.kind = 'vmem'
            islds = ' lds' in (' ' + mods) or 'load_lds' in op
            if op in ('buffer_inv', 'buffer_wbl2'):
                pass
            elif 'load' in op and not islds:
                wr = regs_of(ops[0]); rd = [r for o in ops[1:] for r in regs_of(o)]
            elif 'load' in op:
                rd = [r for o in ops for r in regs_of(o)] + [('s', 'm0')]
                self.special = 'ldsdma'
            elif 'atomic' in op and 'sc0' in mods.split():
                if op.startswith('global_'):
                    wr = regs_of(ops[0]); rd = [r for o in ops[1:] for r in regs_of(o)]
                else:
                    wr = regs_of(ops[0]); rd = [r for o in ops for r in regs_of(o)]
            else:
                rd = [r for o in ops for r in regs_of(o)]
                if 'dwordx3' in op or 'dwordx4' in op:
                    data = ops[0] if op.startswith('buffer_') else ops[1]
                    self.wide_store = set(regs_of(data))
        elif op.startswith('s_'):
            self.kind = 'salu'
            if op == 's_nop':
                self.states = int(ops[0]) + 1
            elif op in ('s_waitcnt', 's_barrier', 's_endpgm', 's_branch', 's_sleep', 's_setprio') or op.startswith('s_cbranch'):
                pass
            elif op.startswith('s_cmp') or op.startswith('s_bitcmp'):
                rd = [r for o in ops for r in regs_of(o)]
            elif op.startswith('s_load') or op.startswith('s_mem') or op.startswith('s_buffer_load'):
                self.kind = 'smem'
                wr = regs_of(ops[0]); rd = [r for o in ops[1:] for r in regs_of(o)]
            else:
                wr = regs_of(ops[0]); rd = [r for o in ops[1:] for r in regs_of(o)]
                if 'saveexec' in op:
                    wr += [('s', 'exec')]
        else:
            raise ValueError("unknown instruction: " + text)
        self.rd = set(rd); self.wr = set(wr)


class Asm:
    def __init__(self):
        self.ins = []
        self.ntok = 0
        self.nlab = 0
        self.bgq = []
        self.automode = None
        self.acc = 0
        self.inchunk = False

    def bg(self, chunks):
        self.bgq.extend(chunks)

    def auto(self, mode):
        self.automode = mode

    def _pop(self):
        gap, fn = self.bgq.pop(0)
        self.inchunk = True
        fn()
        self.inchunk = False

    def flush(self, n=None):
        k = 0
        while self.bgq and (n is None or k < n):
            self._pop(); k += 1
        self.acc = 0

    def flush_until(self, pred):
        while not pred():
            self._pop()
        self.acc = 0

    def _tick(self, i):
        if self.automode is None or self.inchunk:
            return
        if i.kind == 'mfma':
            c = 16 if self.automode == 'gemm' else 8
        elif self.automode == 'gemm':
            c = 0
        elif i.op.startswith(TRANS) or i.op.startswith('v_permlane'):
            c = 8
        else:
            c = 4
        self.acc += c
        while self.bgq and self.acc >= self.bgq[0][0]:
            self.acc -= self.bgq[0][0]
            self._pop()

    def __call__(self, text):
        tok = None
        for line in text.strip().split('\n'):
            line = line.strip()
            if not line or line.startswith(';'):
                continue
            i = Ins(line)
            if i.kind in ('vmem', 'ds'):
                self.ntok += 1
                i.tok = self.ntok
                tok = i.tok
            self.ins.append(i)
            self._tick(i)
        return tok

    def label(self, prefix='L'):
        self.nlab += 1
        return f"{prefix}_{self.nlab}"

    def wait(self, *toks):
        i = Ins('')
        i.kind = 'waittok'
        i.special = [t for t in toks if t is not None]
        self.ins.append(i)

    def _mark(self, kind):
        i = Ins(''); i.kind = kind; self.ins.append(i)

    def fork(self):
        self._mark('fork')

    def nextpath(self):
        self._mark('next')

    def join(self):
        self._mark('join')

    def ifelse(self, cond_setup, f0, f1):
        l1 = self.label('Lelse'); l2 = self.label('Ljoin')
        self(cond_setup)
        self(f"s_cbranch_scc1 {l1}")
        self.fork()
        r0 = f0()
        self(f"s_branch {l2}")
        self.nextpath()
        self(f"{l1}:")
        r1 = f1()
        self.join()
        self(f"{l2}:")
        return r0, r1

    def both(self, cond_setup, text0, text1):
        base = self.ntok
        def f1():
            self.ntok = base
            return self(text1)
        r0, r1 = self.ifelse(cond_setup, lambda: self(text0), f1)
        assert r0 == r1
        return r0

    def ifonly(self, cond_setup, f0):
        l2 = self.label('Lskip')
        self(cond_setup)
        self(f"s_cbranch_scc1 {l2}")
        self.fork()
        r0 = f0()
        self.nextpath()
        self.join()
        self(f"{l2}:")
        return r0

    def _waitcnt_pass(self):
        out = []
        st = [([], [])]
        stack = []

        def trim(lst, n):
            return lst[len(lst) - n:] if 0 < n < len(lst) else ([] if n == 0 else lst)

        def dedupe(x):
            seen = []; res = []
            for vm, lg in x:
                key = (tuple(o.tok or id(o) for o in vm), tuple(o.tok or id(o) for o in lg))
                if key not in seen:
                    seen.append(key); res.append((vm, lg))
            return res

        def apply(nv, nl):
            nonlocal st
            st = dedupe([(trim(vm, nv) if nv is not None else vm, trim(lg, nl) if nl is not None else lg) for vm, lg in st])

        def need1(lst, pred):
            idx = -1
            for k, o in enumerate(lst):
                if pred(o):
                    idx = k
            return None if idx < 0 else len(lst) - 1 - idx

        def emit_need(pred):
            nv = [n for n in (need1(vm, pred) for vm, lg in st) if n is not None]
            nl = [n for n in (need1(lg, pred) for vm, lg in st) if n is not None]
            nv = min(min(nv), 63) if nv else None
            nl = min(min(nl), 15) if nl else None
            if nl is not None and any(o.kind == 'smem' for vm, lg in st for o in lg):
                nl = 0
            parts = []
            if nv is not None: parts.append(f"vmcnt({nv})")
            if nl is not None: parts.append(f"lgkmcnt({nl})")
            if parts:
                out.append(Ins("s_waitcnt " + " ".join(parts)))
                apply(nv, nl)

        for i in self.ins:
            if i.kind == 'waittok':
                ts = set(i.special)
                emit_need(lambda o: o.tok in ts)
                continue
            if i.kind == 'fork':
                stack.append(([(list(a), list(b)) for a, b in st], []))
                out.append(i); continue
            if i.kind == 'next':
                stack[-1][1].extend(st)
                st = [(list(a), list(b)) for a, b in stack[-1][0]]
                out.append(i); continue
            if i.kind == 'join':
                _, done = stack.pop()
                st = dedupe(done + st)
                assert len(st) <= 64, "too many scoreboard histories"
                out.append(i); continue
            if i.op == 's_waitcnt':
                m = re.search(r'vmcnt\((\d+)\)', i.text)
                nv = int(m.group(1)) if m else None
                m = re.search(r'lgkmcnt\((\d+)\)', i.text)
                nl = int(m.group(1)) if m else None
                if nl and any(o.kind == 'smem' for vm, lg in st for o in lg):
                    nl = None
                apply(nv, nl)
                out.append(i)
                continue
            touched = i.rd | i.wr
            if touched:
                emit_need(lambda o: o.wr & touched)
            out.append(i)
            if i.kind == 'vmem':
                for vm, lg in st: vm.append(i)
            elif i.kind in ('ds', 'smem'):
                for vm, lg in st: lg.append(i)
        self.ins = out

    def _hazard_pass(self):
        out = []
        hists = [[]]
        stack = []

        def dist_to(pred, maxd):
            best = None
            for hist in hists:
                d = 0
                for h in reversed(hist):
                    if pred(h):
                        best = d if best is None else min(best, d)
                        break
                    d += h.states
                    if d >= maxd:
                        break
            return best

        for i in self.ins:
            if i.kind == 'fork':
                stack.append(([list(h) for h in hists], [])); continue
            if i.kind == 'next':
                stack[-1][1].extend(hists); hists = [list(h) for h in stack[-1][0]]; continue
            if i.kind == 'join':
                _, done = stack.pop(); hists = done + hists; continue
            if i.kind in ('label', 'none'):
                out.append(i)
                continue
            req = 0

            def chk(pred, n):
                nonlocal req
                d = dist_to(pred, n)
                if d is not None:
                    req = max(req, n - d)
            vr = {r for r in i.rd if r[0] in 'va'}
            vw = {r for r in i.wr if r[0] in 'va'}
            sr = {r for r in i.rd if r[0] == 's'}
            if i.kind == 'mfma':
                chk(lambda h: h.kind == 'valu' and h.wr & vr, 2)
                chk(lambda h: h.op.startswith('v_dot') and h.wr & vr, 3)
                for p, n_ab, n_c in ((4, 8, 6), (8, 12, 10)):
                    chk(lambda h: h.kind == 'mfma' and h.passes == p and h.wr & i.mfma_ab, n_ab)
                    chk(lambda h: h.kind == 'mfma' and h.passes == p and (h.wr & i.mfma_c) and not (h.wr == i.mfma_c and h.op == i.op), n_c)
                    chk(lambda h: h.kind == 'mfma' and h.passes == p and (h.wr & i.wr) and not (h.wr == i.mfma_c and h.op == i.op), n_c)
            if i.kind in ('valu', 'vmem', 'ds'):
                for p, n in ((4, 8), (8, 12)):
                    chk(lambda h: h.kind == 'mfma' and h.passes == p and h.wr & (vr | vw), n)
            if i.kind == 'valu':
                for p, n in ((4, 3), (8, 7)):
                    chk(lambda h: h.kind == 'mfma' and h.passes == p and h.mfma_c & vw, n)
                if i.dpp or i.op.startswith('v_permlane'):
                    chk(lambda h: h.kind == 'valu' and h.wr & vr, 2)
                if i.op.startswith('v_readlane') or i.op.startswith('v_readfirstlane'):
                    chk(lambda h: h.kind == 'valu' and h.wr & vr, 1)
                    chk(lambda h: h.kind == 'valu' and h.wr & sr, 4)
                if not i.op.startswith(TRANS):
                    chk(lambda h: h.op.startswith(TRANS) and h.wr & vr, 1)
                chk(lambda h: h.kind == 'valu' and h.wr & sr, 2)
                chk(lambda h: h.wide_store & vw, 2)
                chk(lambda h: 'sdwa' in h.op and h.wr & (vr | vw), 1)
                chk(lambda h: h.op.startswith('v_dot') and h.op != i.op and h.wr & (vr | vw), 3)
            if i.kind in ('vmem', 'ds'):
                chk(lambda h: h.wide_store & vw, 1)
                chk(lambda h: h.op.startswith('v_dot') and h.wr & vr, 3)
            if i.kind == 'mfma':
                chk(lambda h: h.wide_store & vw, 2)
            if i.kind == 'vmem':
                chk(lambda h: h.kind == 'valu' and h.wr & sr, 5)
                if ('s', 'm0') in i.rd:
                    chk(lambda h: h.kind == 'salu' and ('s', 'm0') in h.wr, 1)
            if i.kind == 'salu':
                chk(lambda h: h.kind == 'valu' and h.wr & sr, 1)
            while req > 0:
                n = min(req, 16)
                nop = Ins(f"s_nop {n - 1}")
                out.append(nop)
                for hist in hists: hist.append(nop)
                req -= n
            out.append(i)
            for hist in hists: hist.append(i)
            hists = [h[-24:] for h in hists]
            if len(hists) > 1:
                uniq = {}
                for h in hists: uniq[tuple(id(x) for x in h)] = h
                hists = list(uniq.values())
        self.ins = out

    def finish(self):
        self._waitcnt_pass()
        self._hazard_pass()
        lines = []
        for i in self.ins:
            if i.kind == 'label' or i.text.startswith('.'):
                lines.append(i.text)
            else:
                lines.append("    " + i.text)
        return "\n".join(lines) + "\n"
```

```python
import sys, struct, math
sys.path.insert(0, 'work')
from asmlib import *

NAME = "sequential_preLN__linear_kernel_hedgehog__mixer_gmlp__prompt"

def f2u(x):
    return struct.unpack('<I', struct.pack('<f', x))[0]
def FH(x):
    return "0x%08x" % f2u(x)

MB = 1 << 20
BUF_OFF = 0
BST = 34816
Z2_OFF = 6 * MB
CLR_OFF = 10 * MB
KVG_OFF = CLR_OFF
F4_OFF = KVG_OFF + 32*8*2176
LOC_OFF = F4_OFF + 2048
LOC_ST = 57344
L_ST2 = 0
L_ST1 = 32768
L_F1 = 49152
L_F2 = L_F1 + 512
L_F3 = L_F2 + 512
L_F4B = L_F3 + 1024
L_F5 = L_F4B + 1024
assert L_F5 + 2048 <= LOC_ST and LOC_OFF + 8*LOC_ST <= CLR_OFF + MB
TS_OFF = 12 * MB
WS_SIZE = 13 * MB

R0 = 0
R1 = 65536
STG = 131072
LDS_SIZE = 163840

sX_, sWQKV, sWO, sWIN, sWSP, sWOUT, sOUT, sWS, sWPHI, sBSP, sDBG = 4, 8, 12, 16, 20, 24, 28, 32, 36, 40, 44
sXC, sJ, sRB, sP, sRB64, sC, sWV, sMODE, sSPIN, sKB, sMT = range(48, 59)
sT0, sT1, sT2, sT3, sT4 = range(59, 64)
sN = 64
sHEAD = 71
sROT = 72
sL = 80
sC2 = 82
sONE = 84
sSO = 86
sSP = 87
sSPL = 88
sIB0 = 89
sIB1 = 90
sU0, sU1, sU2 = 91, 92, 93
sLOC = 3
sBM = 0
sBK = 1
sTS = 98

def srd(b): return S(b, 4)

vLANE, vL16, vTS, vI, vG = 0, 1, 2, 3, 4
vSTG = 5
vRDA = 9
vDMA = 11
vTR = 15
vT = 19
vT2 = 20
vT3 = 21
vB0, vB1 = 22, 23
vH = 24
GAP = 68


class Gen:
    def __init__(self, prof=False, stop=None, force_slow=False, dbgts=None, opt=(), padfrom=None):
        self.padfrom = padfrom
        self.dbgts = dbgts
        self.opt = set(opt)
        self.a = Asm()
        self.prof = prof
        self.stop = stop
        self.force_slow = force_slow
        self.nts = 0
        self.tok = {}
        self.d2 = 2048
        self.tsnames = []

    def ts(self, name):
        if self.padfrom == name:
            self.a("s_memrealtime s[96:97]")
            self.a("s_waitcnt lgkmcnt(0)")
        if not self.prof:
            return
        if self.dbgts and name not in self.dbgts:
            return
        a = self.a
        if name in self.tsnames:
            idx = self.tsnames.index(name)
        else:
            idx = len(self.tsnames); self.tsnames.append(name)
        a(f"s_memrealtime {S(sTS,2)}")
        a("s_waitcnt lgkmcnt(0)")
        a(f"v_writelane_b32 v{vTS}, s{sTS}, {idx}")
        if 'clk' in self.opt:
            a(f"s_memtime {S(sTS,2)}")
            a("s_waitcnt lgkmcnt(0)")
            a(f"v_writelane_b32 v{vTS}, s{sTS}, {idx+30}")

    def barrier(self):
        self.a("s_waitcnt lgkmcnt(0)")
        self.a("s_barrier")

    def lst(self, text):
        slow = "\n".join(l + " sc1" if l.strip().startswith(('buffer_store', 'global_store')) else l for l in text.strip().split('\n'))
        return self.a.both(f"s_cmp_lg_u32 s{sMODE}, 0", text, slow)

    def poll(self, vaddr, vtmp, expect):
        a = self.a
        lp = a.label('Lpoll'); ld = a.label('Lpd')
        a(f"{lp}:")
        a(f"buffer_load_dword v{vtmp}, v{vaddr}, {srd(sWS)}, 0 offen sc1")
        a(f"s_sub_u32 s{sSPIN}, s{sSPIN}, 1")
        a(f"s_cbranch_scc1 {ld}")
        a(f"v_cmp_ne_u32 vcc, {expect}, v{vtmp}")
        a(f"s_cbranch_vccnz {lp}")
        a(f"{ld}:")
        a(f"s_max_i32 s{sSPIN}, s{sSPIN}, 0")
        a("s_waitcnt vmcnt(0)")

    def flag(self, soff_expr_reg, tok):
        a = self.a
        a.wait(tok)
        a(f"v_mov_b32 v{vT}, 1")
        a("s_mov_b64 exec, 1")
        self.lst(f"buffer_store_dword v{vT}, off, {srd(sWS)}, s{soff_expr_reg}")
        a("s_mov_b64 exec, -1")

    def loc(self, dst, idx, mask, pre_shr, shl, off):
        a = self.a
        a(f"s_bfe_u32 s{dst}, s{idx}, {pre_shr | (mask.bit_length() << 16)}")
        a(f"s_lshl_b32 s{dst}, s{dst}, {shl}")
        a(f"s_add_u32 s{dst}, s{dst}, s{sLOC}")
        if off:
            a(f"s_add_u32 s{dst}, s{dst}, {off}")

    def dma_voffs(self, kind, rs):
        a = self.a
        t0, t1 = vB0, vB1
        a(f"v_lshrrev_b32 v{t0}, 3, v{vLANE}")
        if kind == 'quadP':
            a(f"v_lshlrev_b32 v{t1}, 1, v{vG}")
        else:
            a(f"v_and_b32 v{t1}, 1, v{vG}")
            a(f"v_lshlrev_b32 v{t1}, 1, v{t1}")
        a(f"v_xor_b32 v{t1}, v{t1}, v{vLANE}")
        a(f"v_and_b32 v{t1}, 7, v{t1}")
        a(f"v_mul_u32_u24 v{t0}, {rs}, v{t0}")
        a(f"v_lshl_add_u32 v{vDMA}, v{t1}, 4, v{t0}")
        odd = vDMA
        if kind == 'quadN':
            a(f"v_xor_b32 v{t1}, 64, v{vDMA}")
            odd = t1
        for u in range(1, 4):
            a(f"v_add_u32 v{vDMA+u}, {u*(8*rs-1024)}, v{odd if u & 1 else vDMA}")

    def ch_group(self, vbase, srdb, sg, goff, sl, loff, key=None, gap=GAP, pre=None):
        a = self.a
        def mk(u):
            def fn():
                if u == 0:
                    if pre: pre()
                    a(f"s_add_u32 m0, s{sl}, {loff}")
                    a(f"s_add_u32 s{sSO}, s{sg}, {goff}")
                off = f" offset:{u*1024}" if u else ""
                skip = {'nowo': sWO, 'nowin': sWIN, 'nowsp': sWSP, 'nowout': sWOUT}
                if any(o in self.opt and skip[o] == srdb for o in skip):
                    t = None
                else:
                    t = a(f"buffer_load_dwordx4 v{vbase+u}, {srd(srdb)}, s{sSO} offen{off} lds")
                if u == 3 and key is not None:
                    self.tok[key] = t
            return fn
        return [(gap, mk(u)) for u in range(4)]

    def ch_image(self, kind, srdb, rs, colfn, ldsbase, ks0, nks, key, gap=GAP, voffs=True):
        a = self.a
        per = nks // 4
        def setup():
            if voffs:
                self.dma_voffs(kind, rs)
            colfn(sIB0)
            a(f"s_mul_i32 s{sIB1}, s{sWV}, {per*32*rs}")
            a(f"s_add_u32 s{sIB0}, s{sIB0}, s{sIB1}")
            a(f"s_mul_i32 s{sIB1}, s{sWV}, {per*4096}")
        groups = []
        for g in range(per):
            groups.append(self.ch_group(vDMA, srdb, sIB0, (ks0+g)*32*rs, sIB1, ldsbase + g*4096,
                                        key if g == per-1 else None, gap, setup if g == 0 else None))
        return groups

    def tr_addrs(self, dst, ldsbase):
        a = self.a
        t0, t1 = vT, vT2
        a(f"v_lshrrev_b32 v{t0}, 2, v{vLANE}")
        a(f"v_and_b32 v{t1}, 3, v{vLANE}")
        a(f"v_lshlrev_b32 v{t1}, 3, v{t1}")
        a(f"v_lshl_add_u32 v{t1}, v{t0}, 7, v{t1}")
        a(f"v_bfe_u32 v{t0}, v{t0}, 1, 2")
        a(f"v_lshl_add_u32 v{t1}, v{t0}, 5, v{t1}")
        a(f"v_add_u32 v{dst}, {ldsbase}, v{t1}")
        for t in range(1, 4):
            a(f"v_xor_b32 v{dst+t}, {32*t}, v{dst}")

    def stg_voffs(self, rs):
        a = self.a
        t0, t1 = vB0, vB1
        a(f"v_lshrrev_b32 v{t0}, 5, v{vLANE}")
        a(f"v_bfe_u32 v{t1}, v{vLANE}, 3, 2")
        a(f"v_lshl_add_u32 v{t0}, v{t0}, 3, v{t1}")
        a(f"v_mul_u32_u24 v{t0}, {rs}, v{t0}")
        a(f"v_xor_b32 v{t1}, v{vG}, v{vLANE}")
        a(f"v_and_b32 v{t1}, 7, v{t1}")
        a(f"v_lshl_add_u32 v{vSTG}, v{t1}, 4, v{t0}")
        a(f"v_xor_b32 v{t1}, 64, v{vSTG}")
        a(f"v_add_u32 v{vSTG+1}, {16*rs-1024}, v{t1}")
        a(f"v_add_u32 v{vSTG+2}, {4*rs-2048}, v{vSTG}")
        a(f"v_add_u32 v{vSTG+3}, {20*rs-3072}, v{t1}")

    def stg_lane(self, dst):
        a = self.a
        a(f"v_lshrrev_b32 v{dst}, 1, v{vI}")
        a(f"v_xor_b32 v{dst}, v{dst}, v{vG}")
        a(f"v_lshlrev_b32 v{dst}, 4, v{dst}")
        a(f"v_lshl_add_u32 v{dst}, v{vI}, 7, v{dst}")

    def wsp_setup(self):
        a = self.a
        self.stg_voffs(4096)
        self.stg_lane(vB0)
        a(f"s_lshl_b32 s{sSPL}, s{sWV}, 13")
        a(f"s_add_u32 s{sSPL}, s{sSPL}, {STG}")
        a(f"v_add_u32 v{vRDA}, s{sSPL}, v{vB0}")
        a(f"v_xor_b32 v{vRDA+1}, 64, v{vRDA}")
        a(f"s_lshl_b32 s{sSP}, s{sRB64}, 18")
        a(f"s_lshl_b32 s{sSO}, s{sWV}, 10")
        a(f"s_add_u32 s{sSP}, s{sSP}, s{sSO}")

    WSP_ORDER = [6, 7, 0, 1, 2, 3, 4, 5]
    def ch_wspD(self, n, gap=GAP):
        a = self.a
        r = self.WSP_ORDER[n >> 1]; B = n & 1
        def pre():
            if n >= 2:
                a.wait(self.tok[('wspR', n-2)])
            a(f"s_lshr_b32 s{sU2}, s{sROT+r}, 4")
            a(f"s_add_u32 s{sU2}, s{sU2}, s{sSP}")
        return self.ch_group(vSTG, sWSP, sU2, B*32*4096, sSPL, B*4096, ('wspD', n), gap, pre)

    def ch_wspR(self, n, gap=16):
        a = self.a
        r = self.WSP_ORDER[n >> 1]; B = n & 1
        def mk(k2, m):
            def fn():
                if k2 == 0 and m == 0:
                    a.wait(self.tok[('wspD', n)])
                self.tok[('wspR', n)] = a(f"ds_read_b128 {A(32*r+16*k2+4*(2*B+m),4)}, v{vRDA+k2} offset:{B*4096+m*2048}")
            return fn
        return [(gap, mk(k2, m)) for k2 in range(2) for m in range(2)]

    def ch_wsp(self, n0, n1, other=(), gap=GAP):
        other = list(other)
        res = []
        for n in range(n0, n1):
            if n >= 2:
                res += self.ch_wspR(n - 2)
            if n < 16:
                res += self.ch_wspD(n, gap)
            if other:
                res += other.pop(0)
        for o in other:
            res += o
        return res

    def gemm(self, items, ring, nring, la, group, hooks=None):
        a = self.a
        hooks = hooks or {}
        sidx = [k for k, it in enumerate(items) if it[0] is not None]
        pos = {k: n for n, k in enumerate(sidx)}
        toks = {}
        pend = [(n, h) for n in range(len(sidx)) for h in range(2)]
        def rd():
            n, half = pend.pop(0)
            addr, off, _ = items[sidx[n]]
            r = ring + 4 * (n % nring) + 2 * half
            toks[n] = a(f"ds_read_b64_tr_b16 {V(r,2)}, v{addr} offset:{off + self.d2*half}")
        assert la < nring
        while pend and pend[0][0] < la:
            rd()
        waited = -1
        cur = 0
        nm = sum(len(it[2]) for it in items)
        per = 2 if len(pend) > nm else 1
        for idx, it in enumerate(items):
            if idx in hooks:
                hooks[idx]()
            if it[0] is None:
                b = it[1]
            else:
                cur = pos[idx]
                if cur > waited:
                    last = min(cur + group, len(sidx)) - 1
                    while pend and pend[0][0] <= last:
                        rd()
                    a.wait(toks[last]); waited = last
                b = V(ring + 4 * (cur % nring), 4)
            for m in it[2]:
                a(m.format(b=b))
                for _ in range(per):
                    if pend and pend[0][0] <= cur + la:
                        rd()

    def red4(self, op, r, dst):
        a = self.a
        a(f"v_permlane32_swap_b32 v{r[0]}, v{r[1]}")
        a(f"v_permlane32_swap_b32 v{r[2]}, v{r[3]}")
        a(f"{op} v{r[0]}, v{r[0]}, v{r[1]}")
        a(f"{op} v{r[2]}, v{r[2]}, v{r[3]}")
        a(f"v_permlane16_swap_b32 v{r[0]}, v{r[2]}")
        a(f"{op} v{dst}, v{r[0]}, v{r[2]}")

    def bc4(self, r):
        a = self.a
        a(f"v_mov_b32 v{r[2]}, v{r[0]}")
        a(f"v_permlane16_swap_b32 v{r[0]}, v{r[2]}")
        a(f"v_mov_b32 v{r[1]}, v{r[0]}")
        a(f"v_mov_b32 v{r[3]}, v{r[2]}")
        a(f"v_permlane32_swap_b32 v{r[0]}, v{r[1]}")
        a(f"v_permlane32_swap_b32 v{r[2]}, v{r[3]}")

    def setup(self):
        a = self.a
        a(f"s_cmp_ge_u32 s2, 256")
        a(f"s_cbranch_scc1 L_end")
        a(f"s_load_dwordx16 s[64:79], s[0:1], 0")
        a(f"s_load_dwordx8 s[80:87], s[0:1], 64")
        a(f"v_lshrrev_b32 v1, 6, v0")
        a(f"v_and_b32 v{vLANE}, 63, v0")
        a(f"v_readfirstlane_b32 s{sWV}, v1")
        a(f"v_lshlrev_b32 v{vL16}, 4, v{vLANE}")
        a(f"v_and_b32 v{vI}, 15, v{vLANE}")
        a(f"v_lshrrev_b32 v{vG}, 4, v{vLANE}")
        a(f"v_mov_b32 v{vTS}, 0")
        a(f"s_and_b32 s{sXC}, s2, 7")
        a(f"s_lshr_b32 s{sJ}, s2, 3")
        a(f"s_lshr_b32 s{sT0}, s{sJ}, 4")
        a(f"s_lshl_b32 s{sRB}, s{sXC}, 1")
        a(f"s_add_u32 s{sRB}, s{sRB}, s{sT0}")
        a(f"s_and_b32 s{sP}, s{sJ}, 15")
        a(f"s_and_b32 s{sT0}, s{sJ}, 1")
        a(f"s_lshl_b32 s{sRB64}, s{sRB}, 1")
        a(f"s_add_u32 s{sRB64}, s{sRB64}, s{sT0}")
        a(f"s_lshr_b32 s{sC}, s{sP}, 1")
        a(f"s_lshl_b32 s{sKB}, s{sRB}, 2")
        a(f"s_add_u32 s{sKB}, s{sKB}, s{sWV}")
        a(f"s_lshl_b32 s{sMT}, s{sRB64}, 2")
        a(f"s_add_u32 s{sMT}, s{sMT}, s{sWV}")
        a(f"s_mov_b32 s{sSPIN}, 0x80000")
        a(f"s_mov_b32 s{sMODE}, 1")
        a("s_waitcnt lgkmcnt(0)")
        for (b, p, n) in ((sX_, 0, 2048*512*2), (sWQKV, 1, 512*1536*2), (sWPHI, 2, 32*16*16*2), (sWO, 3, 512*512*2),
                          (sWIN, 5, 512*1792*2), (sWSP, 6, 2048*2048*2), (sBSP, 7, 2048*2), (sWOUT, 8, 896*512*2),
                          (sOUT, 9, 2048*512*2), (sDBG, 10, 256), (sWS, 11, WS_SIZE)):
            a(f"s_mov_b32 s{b}, s{64+2*p}")
            a(f"s_and_b32 s{b+1}, s{65+2*p}, 0xffff")
            a(f"s_mov_b32 s{b+2}, {n}")
            a(f"s_mov_b32 s{b+3}, 0x20000")
        self.ts("start")

    def setup2(self):
        a = self.a
        L = math.log2(math.e)
        k = math.sqrt(2.0 / math.pi)
        self.c1 = -2.0 * k * L
        self.c2 = self.c1 * 0.044715
        a(f"s_mov_b32 s{sL}, {FH(L)}")
        a(f"s_mov_b32 s{sL+1}, {FH(L)}")
        a(f"s_mov_b32 s{sC2}, {FH(self.c2)}")
        a(f"s_mov_b32 s{sC2+1}, {FH(self.c2)}")
        a(f"s_mov_b32 s{sONE}, 1.0")
        a(f"s_mov_b32 s{sONE+1}, 1.0")
        a(f"s_mul_i32 s{sLOC}, s{sXC}, {LOC_ST}")
        a(f"s_add_u32 s{sLOC}, s{sLOC}, {LOC_OFF}")
        a(f"s_mul_i32 s{sBM}, s{sMT}, {BST}")
        a(f"s_mul_i32 s{sBK}, s{sKB}, {2*BST}")
        a(f"s_mul_i32 s{sT0}, s{sC}, 7")
        a(f"s_and_b32 s{sT1}, s{sC}, 1")
        a(f"s_add_u32 s{sN+1}, s{sT0}, s{sT1}")
        for t in range(1, 6):
            a(f"s_add_u32 s{sN+1+t}, s{sN+1}, {t}")
        a(f"s_xor_b32 s{sT1}, s{sT1}, 1")
        a(f"s_mul_i32 s{sT1}, s{sT1}, 6")
        a(f"s_add_u32 s{sN}, s{sT0}, s{sT1}")
        for r in range(8):
            a(f"s_add_u32 s{sT0}, s{sC}, {r}")
            a(f"s_and_b32 s{sT0}, s{sT0}, 7")
            a(f"s_lshl_b32 s{sROT+r}, s{sT0}, 11")

    def norm_tiles(self, acc, cs, st, dst):
        a = self.a
        for u in range(4):
            for h in range(2):
                r = acc + 4*u + 2*h
                a(f"v_pk_fma_f32 {V(r,2)}, {V(cs+2*h,2)}, {V(st+2*u,2)}, {V(r,2)} op_sel_hi:[1,0,1]")
        for u in range(4):
            for h in range(2):
                r = acc + 4*u + 2*h
                a(f"v_pk_mul_f32 {V(r,2)}, {V(r,2)}, {V(st+2*u,2)} op_sel:[0,1] op_sel_hi:[1,1]")
        for u in range(4):
            for h in range(2):
                r = acc + 4*u + 2*h
                a(f"v_cvt_pk_bf16_f32 v{dst+2*u+h}, v{r}, v{r+1}")

    def softmax(self, p, ep, red, mid=None):
        a = self.a
        for u in range(4):
            r = p + 4*u
            a(f"v_max3_f32 v{red+2*u}, v{r}, v{r+1}, v{r+2}")
            a(f"v_max3_f32 v{red+2*u+1}, -v{r}, -v{r+1}, -v{r+2}")
        for u in range(4):
            r = p + 4*u
            a(f"v_max_f32 v{red+2*u}, v{red+2*u}, v{r+3}")
            a(f"v_max_f32_e64 v{red+2*u+1}, v{red+2*u+1}, -v{r+3}")
        g0 = [red, red+1, red+2, red+3]; g1 = [red+4, red+5, red+6, red+7]
        self.red8("v_max_f32", g0, g1)
        a(f"v_mul_f32 v{g0[0]}, s{sL}, v{g0[0]}")
        a(f"v_mul_f32 v{g1[0]}, s{sL}, v{g1[0]}")
        self.bc8(g0, g1)
        for u in range(4):
            for h in range(2):
                a(f"v_pk_fma_f32 {V(ep+4*u+2*h,2)}, {V(p+4*u+2*h,2)}, {S(sL,2)}, {V(red+2*u,2)} op_sel_hi:[1,1,0] neg_lo:[0,0,1] neg_hi:[0,0,1]")
            for h in range(2):
                a(f"v_pk_fma_f32 {V(p+4*u+2*h,2)}, {V(p+4*u+2*h,2)}, {S(sL,2)}, {V(red+2*u,2)} op_sel:[0,0,1] op_sel_hi:[1,1,1] neg_lo:[1,0,1] neg_hi:[1,0,1]")
        for k in range(16):
            a(f"v_exp_f32 v{ep+k}, v{ep+k}")
            a(f"v_exp_f32 v{p+k}, v{p+k}")
        if mid: mid()
        t = red + 8
        for u in range(4):
            a(f"v_pk_add_f32 {V(t+4*u,2)}, {V(ep+4*u,2)}, {V(ep+4*u+2,2)}")
            a(f"v_pk_add_f32 {V(t+4*u+2,2)}, {V(p+4*u,2)}, {V(p+4*u+2,2)}")
        for u in range(4):
            a(f"v_add_f32 v{red+2*u}, v{t+4*u}, v{t+4*u+1}")
            a(f"v_add_f32 v{red+2*u+1}, v{t+4*u+2}, v{t+4*u+3}")
        self.red8("v_add_f32", g0, g1)
        a(f"v_rcp_f32 v{g0[0]}, v{g0[0]}")
        a(f"v_rcp_f32 v{g1[0]}, v{g1[0]}")
        self.bc8(g0, g1)
        for u in range(4):
            for h in range(2):
                a(f"v_pk_mul_f32 {V(ep+4*u+2*h,2)}, {V(ep+4*u+2*h,2)}, {V(red+2*u,2)} op_sel_hi:[1,0]")
                a(f"v_pk_mul_f32 {V(p+4*u+2*h,2)}, {V(p+4*u+2*h,2)}, {V(red+2*u,2)} op_sel:[0,1] op_sel_hi:[1,1]")

    def red8(self, op, *gs):
        a = self.a
        for r in gs:
            a(f"v_permlane32_swap_b32 v{r[0]}, v{r[1]}")
            a(f"v_permlane32_swap_b32 v{r[2]}, v{r[3]}")
        for r in gs:
            a(f"{op} v{r[0]}, v{r[0]}, v{r[1]}")
            a(f"{op} v{r[2]}, v{r[2]}, v{r[3]}")
        for r in gs:
            a(f"v_permlane16_swap_b32 v{r[0]}, v{r[2]}")
        for r in gs:
            a(f"{op} v{r[0]}, v{r[0]}, v{r[2]}")

    def bc8(self, *gs):
        a = self.a
        for r in gs:
            a(f"v_mov_b32 v{r[2]}, v{r[0]}")
        for r in gs:
            a(f"v_permlane16_swap_b32 v{r[0]}, v{r[2]}")
        for r in gs:
            a(f"v_mov_b32 v{r[1]}, v{r[0]}")
            a(f"v_mov_b32 v{r[3]}, v{r[2]}")
        for r in gs:
            a(f"v_permlane32_swap_b32 v{r[0]}, v{r[1]}")
            a(f"v_permlane32_swap_b32 v{r[2]}, v{r[3]}")

    def retry(self, loads, check, cost=1):
        a = self.a
        mode = a.automode; a.auto(None)
        lp = a.label('Lrt'); ld = a.label('Lrtd')
        check()
        a(f"s_cbranch_vccz {ld}")
        a.fork()
        a(f"{lp}:")
        loads()
        a(f"s_sub_u32 s{sSPIN}, s{sSPIN}, {cost}")
        a(f"s_cselect_b32 s{sSPIN}, 0, s{sSPIN}")
        a("s_waitcnt vmcnt(0)")
        a(f"s_cbranch_scc1 {ld}")
        check()
        a(f"s_cbranch_vccnz {lp}")
        a.nextpath(); a.join()
        a(f"{ld}:")
        a.auto(mode)

    def p1(self):
        a = self.a
        vA = 192; vCS = 40; vONES = 24; vRX = 32; vSP = 52; vID = 60; vWP = 62
        WSL = [R1, R1+32768, R1+65536, R1]
        def opA(u, ks):
            return V(vA+4*ks, 4) if u == 0 else A(64*(u-1)+4*ks, 4)
        self.stg_voffs(1024)
        a(f"s_lshl_b32 s{sSP}, s{sRB64}, 16")
        a(f"s_and_b32 s{sT0}, s{sWV}, 1")
        a(f"s_lshl_b32 s{sT0}, s{sT0}, 15")
        a(f"s_add_u32 s{sSP}, s{sSP}, s{sT0}")
        a(f"s_lshr_b32 s{sT0}, s{sWV}, 1")
        a(f"s_lshl_b32 s{sT0}, s{sT0}, 7")
        a(f"s_add_u32 s{sSP}, s{sSP}, s{sT0}")
        a(f"s_lshl_b32 s{sIB1}, s{sWV}, 12")
        def gx(s, gap=GAP): return self.ch_group(vSTG, sX_, sSP, 256*s, sIB1, R0 + 16384*s, None, gap)
        def gw(s, mat, lds, key=None, gap=GAP):
            return self.ch_group(vDMA, sWQKV, sIB0, s*128*3072 + mat*1024, sIB1, lds, key, gap)
        def stage(s, gap=GAP):
            return gx(s, gap) + gw(s, 1, WSL[s], None, gap) + gw(s, 2, WSL[s]+16384, ('st', s), gap)
        a.bg(gx(0)); a.flush()
        self.dma_voffs('quadN', 3072)
        a(f"s_mul_i32 s{sIB0}, s{sWV}, {32*3072}")
        a(f"s_lshl_b32 s{sT0}, s{sC}, 7")
        a(f"s_add_u32 s{sIB0}, s{sIB0}, s{sT0}")
        a.bg(stage(0)[4:]); a.flush()
        for k in range(4):
            a(f"v_mov_b32 v{28+k}, -1")
        a(f"s_lshl_b32 s{sT0}, s2, 12")
        a(f"s_lshl_b32 s{sT1}, s{sWV}, 10")
        a(f"s_add_u32 s{sT0}, s{sT0}, s{sT1}")
        a(f"s_add_u32 s{sT0}, s{sT0}, {CLR_OFF}")
        tclr = a(f"buffer_store_dwordx4 {V(28,4)}, v{vL16}, {srd(sWS)}, s{sT0} offen sc1")
        if 'nocodepf' not in self.opt:
            a(f"s_getpc_b64 {S(sT1,2)}")
            a("L_pc:")
            a(f"s_lshl_b32 s{sT0}, s{sJ}, 2")
            a(f"s_add_u32 s{sT0}, s{sT0}, s{sWV}")
            a(f"s_lshl_b32 s{sT0}, s{sT0}, 9")
            a(f"v_and_b32 v{vT}, 3, v{vLANE}")
            a(f"v_lshl_add_u32 v{vT}, v{vT}, 7, s{sT0}")
            a(f"v_min_u32 v{vT}, L_end-L_pc, v{vT}")
            a(f"v_mov_b32 v{vT3}, s{sT2}")
            a(f"v_add_co_u32 v{vT2}, vcc, s{sT1}, v{vT}")
            a(f"v_addc_co_u32 v{vT3}, vcc, 0, v{vT3}, vcc")
            a(f"global_load_dword v131, {V(vT2,2)}, off")
        a(f"s_lshl_b32 s{sHEAD}, s{sC}, 2")
        a(f"s_add_u32 s{sHEAD}, s{sHEAD}, s{sWV}")
        a(f"v_lshlrev_b32 v{vT}, 7, v{vG}")
        a(f"v_lshl_add_u32 v{vT}, v{vI}, 1, v{vT}")
        a(f"s_lshl_b32 s{sT1}, s{sHEAD}, 9")
        for j in range(4):
            a(f"buffer_load_ushort v{132+j}, v{vT}, {srd(sWPHI)}, s{sT1} offen offset:{32*j}")
        a.bg(stage(1, 40)); a.auto('valu')
        self.setup2()
        for k in range(4):
            a(f"v_mov_b32 v{vONES+k}, 0x3f803f80")
        self.stg_lane(vT)
        for u in range(4):
            a(f"s_add_u32 s{sT0}, s{sWV}, {u}")
            a(f"s_and_b32 s{sT0}, s{sT0}, 3")
            a(f"s_lshl_b32 s{sT0}, s{sT0}, 11")
            a(f"v_add_u32 v{vRX+2*u}, s{sT0}, v{vT}")
            a(f"v_xor_b32 v{vRX+2*u+1}, 64, v{vRX+2*u}")
        a(f"v_bfe_u32 v{vT}, v{vLANE}, 2, 2")
        a(f"v_lshl_add_u32 v{vT}, v{vG}, 3, v{vT}")
        a(f"v_and_b32 v{vT2}, 3, v{vLANE}")
        a(f"v_lshlrev_b32 v{vT2}, 3, v{vT2}")
        a(f"v_lshl_add_u32 v{vT2}, v{vT}, 7, v{vT2}")
        a(f"v_bfe_u32 v{vT}, v{vLANE}, 3, 2")
        a(f"v_xor_b32 v{vT}, s{sWV}, v{vT}")
        a(f"v_lshl_add_u32 v{vTR}, v{vT}, 5, v{vT2}")
        a(f"v_add_u32 v{vTR+1}, {R1}, v{vTR}")
        a(f"v_add_u32 v{vTR+2}, {R1+65536}, v{vTR}")
        a.auto(None)
        a(f"v_lshlrev_b32 v{vT}, 2, v{vG}")
        a(f"v_sub_u32 v{vT}, v{vI}, v{vT}")
        a(f"v_mov_b32 v{vT2}, 0x3f80")
        a(f"v_mov_b32 v{vT3}, 0x3f800000")
        for h in range(2):
            a(f"v_cmp_eq_u32 vcc, {2*h}, v{vT}")
            a(f"v_cndmask_b32 v{vID+h}, 0, v{vT2}, vcc")
            a(f"v_cmp_eq_u32 vcc, {2*h+1}, v{vT}")
            a(f"v_cndmask_b32 v{vID+h}, v{vID+h}, v{vT3}, vcc")
        for k in range(4):
            a(f"v_mov_b32 v{28+k}, 0")
        a.flush()
        def arrive():
            a(f"s_getreg_b32 s{sT0}, hwreg(HW_REG_XCC_ID)")
            a(f"s_and_b32 s{sT0}, s{sT0}, 7")
            a(f"s_lshl_b32 s{sT0}, s{sT0}, 3")
            a(f"s_mov_b64 {S(sT1,2)}, 1")
            a(f"s_lshl_b64 {S(sT1,2)}, {S(sT1,2)}, s{sT0}")
            a(f"v_mov_b32 v{vT2}, s{sT1}")
            a(f"v_mov_b32 v{vT3}, s{sT2}")
            a(f"s_lshl_b32 s{sT0}, s{sXC}, 5")
            a("s_mov_b64 exec, 1")
            a(f"buffer_atomic_add_x2 {V(vT2,2)}, off, {srd(sDBG)}, s{sT0}")
            a("s_mov_b64 exec, -1")
        def reads(ks):
            s = ks >> 2; j = ks & 3
            ad, off = (vTR+2, 0) if s == 2 else (vTR+1, WSL[s]-R1)
            rb = 96 + 8*(ks & 1)
            res = []
            for mat in range(2):
                for h in range(2):
                    res.append(f"ds_read_b64_tr_b16 {V(rb+4*mat+2*h,2)}, v{ad} offset:{off+mat*16384+j*4096+h*512}")
            for u in range(4):
                res.insert(2*u if u < 2 else 4+u, f"ds_read_b128 {opA(u,ks)}, v{vRX+2*u+(ks&1)} offset:{s*16384+(j>>1)*8192}")
            return res
        for s in range(4):
            a.wait(self.tok[('st', s)], tclr)
            self.barrier()
            self.ts(f"st{s}")
            if s == 0:
                if 'noarr' not in self.opt:
                    a.ifonly(f"s_cmp_lg_u32 s{sWV}, 0", arrive)
                a.bg(stage(2, 48))
            elif s == 1:
                a.bg(stage(3, 48))
            elif s == 2:
                def touch():
                    a(f"s_mul_i32 s{sU0}, s{sC}, {34*128}")
                    a(f"s_add_u32 s{sU0}, s{sU0}, s{sBM}")
                    a(f"v_min_u32 v{vB0}, 33, v{vLANE}")
                    a(f"v_lshlrev_b32 v{vB0}, 7, v{vB0}")
                    a(f"buffer_load_dword v130, v{vB0}, {srd(sWS)}, s{sU0} offen sc1")
                a.bg(([] if 'notouch' in self.opt else [(16, touch)]) + gw(0, 0, R0) + gw(1, 0, R0+16384))
            else:
                a.bg(gw(2, 0, R0+32768))
            for t in reads(4*s):
                last = a(t)
            a.auto('gemm')
            for ks in range(4*s, 4*s+4):
                a.wait(last)
                fill = reads(ks+1) if (ks & 3) != 3 else []
                nrd = len(fill)
                rb = 96 + 8*(ks & 1)
                ms = []
                for mat in range(2):
                    for u in range(4):
                        d = V(64+16*mat+4*u, 4)
                        ms.append(f"v_mfma_f32_16x16x32_bf16 {d}, {V(rb+4*mat,4)}, {opA(u,ks)}, {d if ks else 0}")
                    d = V(vCS+4*mat, 4)
                    ms.append(f"v_mfma_f32_16x16x32_bf16 {d}, {V(rb+4*mat,4)}, {V(vONES,4)}, {d if ks else 0}")
                n = 0
                for m in ms:
                    a(m)
                    for _ in range(2):
                        if fill:
                            t = a(fill.pop(0)); n += 1
                            if n == nrd: last = t
            a.auto(None)
            a.flush()
            for k in range(16):
                x = vA + 16*s + k
                a(f"v_dot2c_f32_bf16 v{28+2*(k&1)}, v{x}, v{vONES}")
                a(f"v_dot2c_f32_bf16 v{29+2*(k&1)}, v{x}, v{x}")
        self.ts("kv_gemm")
        a(f"v_pk_add_f32 {V(28,2)}, {V(28,2)}, {V(30,2)}")
        self.allred2(28, 29, 30)
        a(f"v_mul_f32 v28, {FH(-1.0/512)}, v28")
        a(f"v_mul_f32 v29, {FH(1.0/512)}, v29")
        a(f"v_fma_f32 v29, -v28, v28, v29")
        a(f"v_max_f32 v29, 0, v29")
        a(f"v_add_f32 v29, {FH(1e-5)}, v29")
        a(f"v_rsq_f32 v29, v29")
        a(f"s_lshl_b32 s{sT0}, s{sWV}, 7")
        a(f"s_add_u32 s{sT0}, s{sT0}, {STG}")
        a(f"v_lshl_add_u32 v{vT}, v{vG}, 13, s{sT0}")
        a(f"v_lshl_add_u32 v{vT}, v{vI}, 3, v{vT}")
        a(f"ds_write_b64 v{vT}, {V(28,2)}")
        for h in range(2):
            a(f"v_lshl_or_b32 v{vWP+h}, v{133+2*h}, 16, v{132+2*h}")
        a(f"s_lshl_b32 s{sT1}, s{sWV}, 13")
        a(f"s_add_u32 s{sT1}, s{sT1}, {STG}")
        for u in range(4):
            a(f"s_add_u32 s{sT0}, s{sWV}, {u}")
            a(f"s_and_b32 s{sT0}, s{sT0}, 3")
            a(f"s_lshl_b32 s{sT0}, s{sT0}, 7")
            a(f"s_add_u32 s{sT0}, s{sT0}, s{sT1}")
            a(f"v_lshl_add_u32 v{vRX+u}, v{vI}, 3, s{sT0}")
        self.barrier()
        for u in range(4):
            a(f"ds_read_b64 {V(vSP+2*u,2)}, v{vRX+u}")
        a(f"v_and_b32 v{vRX+4}, 7, v{vLANE}")
        a(f"v_lshlrev_b32 v{vRX+4}, 5, v{vRX+4}")
        def ld_init():
            a(f"buffer_load_dwordx2 {V(vRX+6,2)}, v{vRX+4}, {srd(sDBG)}, 0 offen sc1")
        two = self.ch_image('quadP', sWO, 1024, lambda d: a(f"s_lshl_b32 s{d}, s{sC}, 7"), R1, 0, 16, 'wo')
        a.bg(gw(3, 0, R0+49152, 'wq', 16) + two[0] + two[1] + [(GAP, ld_init)] + two[2] + two[3])
        a.auto('valu')
        self.norm_tiles(64, vCS, vSP, 112)
        for u in range(4):
            a(f"v_mfma_f32_16x16x16_bf16 {V(64+4*u,4)}, {V(vWP,2)}, {V(112+2*u,2)}, 0")
        self.norm_tiles(80, vCS+4, vSP, 96)
        for u in range(4):
            a(f"v_mfma_f32_16x16x16_bf16 {V(160+4*u,4)}, {V(96+2*u,2)}, {V(vID,2)}, 0")
        self.softmax(64, 80, 120)
        for base in (80, 64):
            for u in range(4):
                for h in range(2):
                    a(f"v_cvt_pk_bf16_f32 v{base+4*u+h}, v{base+4*u+2*h}, v{base+4*u+2*h+1}")
        for u in range(4):
            a(f"v_mfma_f32_16x16x16_bf16 {V(128+4*u,4)}, {V(80+4*u,2)}, {V(vID,2)}, 0")
        for u in range(4):
            a(f"v_mfma_f32_16x16x16_bf16 {V(144+4*u,4)}, {V(64+4*u,2)}, {V(vID,2)}, 0")
        for u in range(4):
            for h in range(2):
                a(f"v_cvt_pk_bf16_f32 v{104+2*u+h}, v{160+4*u+2*h}, v{160+4*u+2*h+1}")
        for sg in range(2):
            for u in range(4):
                for h in range(2):
                    r = 128 + 16*sg + 4*u + 2*h
                    a(f"v_cvt_pk_bf16_f32 v{64+8*sg+2*u+h}, v{r}, v{r+1}")
        for pr in range(2):
            for sg in range(2):
                d = V(80+4*sg, 4)
                a(f"v_mfma_f32_16x16x32_bf16 {d}, {V(64+8*sg+4*pr,4)}, {V(104+4*pr,4)}, {d if pr else 0}")
                d = V(88+4*sg, 4)
                a(f"v_mfma_f32_16x16x32_bf16 {d}, {V(64+8*sg+4*pr,4)}, {V(vONES,4)}, {d if pr else 0}")
        a.auto(None)
        a.flush()
        def ck_init():
            a(f"v_sad_u8 v{vRX+5}, v{vRX+6}, 0, 0")
            a(f"v_sad_u8 v{vRX+5}, v{vRX+7}, 0, v{vRX+5}")
            a(f"v_cmp_gt_u32 vcc, 32, v{vRX+5}")
        if 'noarr' not in self.opt:
            self.retry(lambda: (a("s_sleep 8"), ld_init()), ck_init, 4)
        a(f"v_or_b32 v{vRX+6}, v{vRX+6}, v{vRX+7}")
        a(f"v_and_b32 v{vRX+6}, 0x20202020, v{vRX+6}")
        a(f"v_readlane_b32 s{sT0}, v{vRX+6}, s{sXC}")
        a(f"s_cmp_eq_u32 s{sT0}, 0")
        a(f"s_cselect_b32 s{sMODE}, {0 if 'noarr' in self.opt else 1}, {1 if self.force_slow else 0}")
        self.ts("k_epi")
        if 'notouch' not in self.opt:
            a(f"s_lshl_b32 s{sT0}, s{sJ}, 2")
            a(f"s_add_u32 s{sT0}, s{sT0}, s{sWV}")
            a(f"s_lshl_b32 s{sT0}, s{sT0}, 9")
            a(f"v_and_b32 v{vT}, 3, v{vLANE}")
            a(f"v_lshl_add_u32 v{vT}, v{vT}, 7, s{sT0}")
            a(f"v_min_u32 v{vT}, {LOC_ST-128}, v{vT}")
            a(f"buffer_load_dword v130, v{vT}, {srd(sWS)}, s{sLOC} offen sc1")
        a(f"s_lshr_b32 s{sT4}, s{sHEAD}, 3")
        a(f"s_mul_i32 s{sT4}, s{sT4}, {BST}")
        a(f"s_and_b32 s{sT0}, s{sHEAD}, 7")
        a(f"s_mul_i32 s{sT0}, s{sT0}, 2304")
        a(f"s_add_u32 s{sT4}, s{sT4}, s{sT0}")
        a(f"s_add_u32 s{sT4}, s{sT4}, 16384")
        a(f"s_mul_i32 s{sT0}, s{sRB64}, {4*BST}")
        a(f"s_add_u32 s{sT0}, s{sT0}, s{sT4}")
        a(f"v_cmp_eq_u32 vcc, 1, v{vI}")
        a(f"v_lshlrev_b32 v{vT2}, 4, v{vG}")
        a(f"v_lshl_add_u32 v{vT2}, v{vI}, 6, v{vT2}")
        for k in range(4):
            a(f"v_cndmask_b32 v{88+k}, v{88+k}, v{92+k}, vcc")
        tkv = self.lst(f"buffer_store_dwordx4 {V(80,4)}, v{vL16}, {srd(sWS)}, s{sT0} offen\n"
                       f"buffer_store_dwordx4 {V(84,4)}, v{vL16}, {srd(sWS)}, s{sT0} offen offset:1024\n"
                       f"s_mov_b32 exec_lo, 0x00030003\ns_mov_b32 exec_hi, 0x00030003\n"
                       f"buffer_store_dwordx4 {V(88,4)}, v{vT2}, {srd(sWS)}, s{sT0} offen offset:2048\n"
                       f"s_mov_b64 exec, -1")
        a.wait(self.tok['wq'])
        self.barrier()
        self.ts("kvl_pub")
        self.wsp_setup()
        self.loc(sU0, sHEAD, 31, 0, 4, L_F1)
        a(f"v_and_b32 v{vRX}, 3, v{vLANE}")
        a(f"v_lshl_add_u32 v{vRX}, v{vRX}, 2, s{sU0}")
        a(f"s_and_b32 s{sT1}, s{sRB64}, 3")
        a(f"s_lshl_b32 s{sT2}, s{sT1}, 2")
        a(f"s_add_u32 s{sU0}, s{sU0}, s{sT2}")
        a(f"s_mul_i32 s{sT1}, s{sT1}, 544")
        a(f"s_mul_i32 s{sT2}, s{sXC}, {16*BST}")
        a(f"s_add_u32 s{sT2}, s{sT2}, s{sT4}")
        a(f"s_add_u32 s{sT2}, s{sT2}, s{sT1}")
        a(f"s_lshl_b32 s{sT3}, s{sHEAD}, 3")
        a(f"s_add_u32 s{sT0}, s{sT3}, s{sXC}")
        a(f"s_mul_i32 s{sT0}, s{sT0}, 2176")
        a(f"s_add_u32 s{sT0}, s{sT0}, s{sT1}")
        a(f"s_add_u32 s{sU1}, s{sT0}, {KVG_OFF}")
        a(f"s_mul_i32 s{sT3}, s{sT3}, 2176")
        a(f"s_add_u32 s{sT3}, s{sT3}, {KVG_OFF}")
        def h_flag():
            a.auto(None)
            a.wait(tkv)
            a(f"v_mov_b32 v{vT}, 1")
            a("s_mov_b64 exec, 1")
            self.lst(f"buffer_store_dword v{vT}, off, {srd(sWS)}, s{sU0}")
            a("s_mov_b64 exec, -1")
            a.auto('gemm')
        def ld_f1():
            a(f"buffer_load_dword v{vRX+1}, v{vRX}, {srd(sWS)}, 0 offen sc1")
        def h_quart():
            self.retry(ld_f1, lambda: a(f"v_cmp_ne_u32 vcc, 1, v{vRX+1}"))
            a.auto(None)
            a(f"s_mov_b32 exec_hi, 3")
            for r in range(4):
                a(f"buffer_load_dwordx4 {V(128+4*r,4)}, v{vL16}, {srd(sWS)}, s{sT2} offen sc1")
                if r < 3:
                    a(f"s_add_u32 s{sT2}, s{sT2}, {4*BST}")
            a("s_mov_b64 exec, -1")
            a.auto('gemm')
        items = []
        self.d2 = 512
        for ks in range(16):
            ms = []
            for u in range(4):
                d = V(64+4*u, 4)
                ms.append(f"v_mfma_f32_16x16x32_bf16 {d}, {{b}}, {opA(u,ks)}, {d if ks else 0}")
            d = V(vCS, 4)
            ms.append(f"v_mfma_f32_16x16x32_bf16 {d}, {{b}}, {V(vONES,4)}, {d if ks else 0}")
            items.append((vTR, ks*4096, ms))
        a.bg(self.ch_wsp(0, 2))
        a.auto('gemm')
        self.gemm(items, 96, 4, 2, 1, {3: h_flag, 8: ld_f1, 12: h_quart})
        a.auto(None)
        self.d2 = 2048
        a.flush()
        for h in range(2):
            a(f"v_pk_add_f32 {V(128+2*h,2)}, {V(128+2*h,2)}, {V(132+2*h,2)}")
            a(f"v_pk_add_f32 {V(136+2*h,2)}, {V(136+2*h,2)}, {V(140+2*h,2)}")
        for h in range(2):
            a(f"v_pk_add_f32 {V(128+2*h,2)}, {V(128+2*h,2)}, {V(136+2*h,2)}")
        a(f"s_mov_b32 exec_hi, 3")
        a(f"buffer_store_dwordx4 {V(128,4)}, v{vL16}, {srd(sWS)}, s{sU1} offen sc1")
        a("s_mov_b64 exec, -1")
        a.wait(self.tok['wo'])
        self.barrier()
        self.ts("q_gemm")
        vG0 = 192
        a(f"v_and_b32 v{vT2}, 7, v{vI}")
        a(f"v_mul_u32_u24 v{vT2}, 2176, v{vT2}")
        a(f"v_lshrrev_b32 v{vT3}, 3, v{vI}")
        a(f"v_lshl_add_u32 v{vT2}, v{vT3}, 6, v{vT2}")
        a(f"v_lshl_add_u32 v{vRX}, v{vG}, 4, v{vT2}")
        def gl(k):
            def fn():
                if k == 0:
                    a(f"buffer_load_dwordx4 {V(188,4)}, v{vRX}, {srd(sWS)}, s{sT3} offen offset:2048 sc1")
                    a(f"s_mov_b32 s{sU0}, s{sT3}")
                    return
                X, sg = (k-1) >> 1, (k-1) & 1
                a(f"buffer_load_dwordx4 {V(vG0+8*X+4*sg,4)}, v{vL16}, {srd(sWS)}, s{sU0} offen offset:{sg*1024} sc1")
                if sg:
                    a(f"s_add_u32 s{sU0}, s{sU0}, 2176")
            return fn
        def colz2(d):
            a(f"s_min_u32 s{d}, s{sP}, 13")
            a(f"s_lshl_b32 s{d}, s{d}, 7")
            a(f"s_add_u32 s{d}, s{d}, 1792")
        self.win1 = self.ch_image('quadP', sWIN, 3584, colz2, R0, 0, 16, 'win1')
        a.bg(self.win1[0] + self.win1[1])
        a.auto('valu')
        self.norm_tiles(64, vCS, vSP, 112)
        for u in range(4):
            a(f"v_mfma_f32_16x16x16_bf16 {V(64+4*u,4)}, {V(vWP,2)}, {V(112+2*u,2)}, 0")
        def mid():
            a.flush()
            a.bg([(24, gl(k)) for k in range(17)])
        self.softmax(64, 80, 120, mid)
        for u in range(4):
            for h in range(2):
                a(f"v_cvt_pk_bf16_f32 v{96+4*u+h}, v{80+4*u+2*h}, v{80+4*u+2*h+1}")
                a(f"v_cvt_pk_bf16_f32 v{96+4*u+2+h}, v{64+4*u+2*h}, v{64+4*u+2*h+1}")
        a.auto(None)
        a.flush()
        self.ts("q_epi")
        def ck_g():
            a(f"v_max_u32 v{vT}, v188, v189")
            a(f"v_max3_u32 v{vT}, v{vT}, v190, v191")
            for k in range(32):
                a(f"v_max3_u32 v{vT}, v{vT}, v{vG0+2*k}, v{vG0+2*k+1}")
            a(f"v_cmp_eq_u32 vcc, -1, v{vT}")
        self.retry(lambda: [gl(k)() for k in range(17)], ck_g, 16)
        self.ts("kv_gath")
        n = 8
        while n > 1:
            n //= 2
            for k in range(n):
                for h in range(4):
                    a(f"v_pk_add_f32 {V(vG0+8*k+2*h,2)}, {V(vG0+8*k+2*h,2)}, {V(vG0+8*(k+n)+2*h,2)}")
        for ctl in ("row_half_mirror", "quad_perm:[1,0,3,2]", "quad_perm:[2,3,0,1]"):
            for k in range(4):
                a(f"v_add_f32_dpp v{188+k}, v{188+k}, v{188+k} {ctl} row_mask:0xf bank_mask:0xf")
        for k in range(4):
            a(f"v_cvt_pk_bf16_f32 v{128+k}, v{vG0+2*k}, v{vG0+2*k+1}")
        for h in range(2):
            a(f"v_cvt_pk_bf16_f32 v{188+h}, v{188+2*h}, v{189+2*h}")
        for sg in range(2):
            for h in range(2):
                a(f"v_mov_b32_dpp v{132+2*sg+h}, v{188+h} row_newbcast:{8*sg} row_mask:0xf bank_mask:0xf")
        for u in range(4):
            a(f"v_mfma_f32_16x16x32_bf16 {V(64+4*u,4)}, {V(128,4)}, {V(96+4*u,4)}, 0")
        for u in range(4):
            a(f"v_mfma_f32_16x16x32_bf16 {V(80+4*u,4)}, {V(132,4)}, {V(96+4*u,4)}, 0")
        a(f"s_lshr_b32 s{sT1}, s{sHEAD}, 1")
        a(f"s_lshl_b32 s{sT1}, s{sT1}, 10")
        a(f"s_and_b32 s{sT0}, s{sHEAD}, 1")
        a(f"s_lshl_b32 s{sT0}, s{sT0}, 3")
        a(f"s_add_u32 s{sT1}, s{sT1}, s{sT0}")
        a(f"s_mul_i32 s{sT0}, s{sRB64}, {4*BST}")
        a(f"s_add_u32 s{sT4}, s{sT1}, s{sT0}")
        for u in range(4):
            a(f"s_add_u32 s{sT0+u}, s{sWV}, {u}")
            a(f"s_and_b32 s{sT0+u}, s{sT0+u}, 3")
            a(f"s_mul_i32 s{sT0+u}, s{sT0+u}, {BST}")
            a(f"s_add_u32 s{sT0+u}, s{sT0+u}, s{sT4}")
        for u in range(4):
            a(f"v_add_f32 v{80+4*u}, {FH(1e-6)}, v{80+4*u}")
        for u in range(4):
            a(f"v_rcp_f32 v{80+4*u}, v{80+4*u}")
        for u in range(4):
            for h in range(2):
                a(f"v_pk_mul_f32 {V(64+4*u+2*h,2)}, {V(64+4*u+2*h,2)}, {V(80+4*u,2)} op_sel_hi:[1,0]")
        for u in range(4):
            for h in range(2):
                a(f"v_cvt_pk_bf16_f32 v{112+2*u+h}, v{64+4*u+2*h}, v{65+4*u+2*h}")
        self.to = self.lst("\n".join(f"buffer_store_dwordx2 {V(112+2*u,2)}, v{vL16}, {srd(sWS)}, s{sT0+u} offen" for u in range(4)))
        self.ts("o_st")

    def rowoff(self, dst, t0):
        a = self.a
        a(f"v_lshrrev_b32 v{t0}, 2, v{vI}")
        a(f"v_lshlrev_b32 v{t0}, 3, v{t0}")
        a(f"v_and_or_b32 v{t0}, v{vI}, 3, v{t0}")
        a(f"s_lshr_b32 s{sT3}, s{sMT}, 1")
        a(f"s_lshl_b32 s{sT3}, s{sT3}, 5")
        a(f"s_and_b32 s{sT4}, s{sMT}, 1")
        a(f"s_lshl_b32 s{sT4}, s{sT4}, 2")
        a(f"s_add_u32 s{sT3}, s{sT3}, s{sT4}")
        a(f"v_add_u32 v{dst}, s{sT3}, v{t0}")

    def p2a(self):
        a = self.a
        vA = 80; nA = 12; acc = 40; pre = 128
        self.tr_addrs(vTR, R1)
        def preload(k0, k1):
            for k in range(k0, k1):
                ks, t = k >> 1, k & 1
                for h in range(2):
                    a(f"ds_read_b64_tr_b16 {V(pre+4*k+2*h,2)}, v{vTR+t} offset:{ks*4096+h*2048}")
        preload(0, 7)
        self.loc(sT1, sRB64, 3, 0, 7, L_F2)
        a(f"s_lshl_b32 s{sT0}, s{sHEAD}, 2")
        a(f"s_add_u32 s{sT0}, s{sT0}, s{sT1}")
        self.flag(sT0, self.to)
        self.ts("o_pub")
        self.rowoff(38, vT)
        a(f"v_lshlrev_b32 v38, 10, v38")
        a(f"v_lshl_add_u32 v38, v{vG}, 3, v38")
        a(f"s_lshl_b32 s{sT0}, s{sC}, 7")
        for t in range(4):
            a(f"buffer_load_dwordx2 {V(vH+2*t,2)}, v38, {srd(sX_)}, s{sT0} offen offset:{32*t}")
        preload(7, 32)
        a(f"v_and_b32 v38, 31, v{vLANE}")
        a(f"v_lshl_add_u32 v38, v38, 2, s{sT1}")
        a(f"s_mov_b32 s{sT0}, s{sBM}")
        self.poll(38, 39, 1)
        self.ts("o_rdy")
        def lda(ks):
            if ks and ks % 4 == 0:
                a(f"s_add_u32 s{sT0}, s{sT0}, 4096")
            a(f"buffer_load_dwordx4 {V(vA+4*(ks%nA),4)}, v{vL16}, {srd(sWS)}, s{sT0} offen offset:{(ks%4)*1024} sc1")
        for ks in range(8):
            lda(ks)
        items = []; hooks = {}
        for ks in range(16):
            if ks + 8 < 16:
                hooks[4*ks+1] = (lambda k: (lambda: lda(k)))(ks + 8)
            for t in range(4):
                d = V(acc+4*t, 4)
                m = [f"v_mfma_f32_16x16x32_bf16 {d}, {{b}}, {V(vA+4*(ks%nA),4)}, {d if ks else 0}"]
                items.append((None, V(pre+4*(2*ks+t),4), m) if t < 2 else (vTR + t, ks*4096, m))
        hooks[36] = lambda: (a.bg(self.win1[2] + self.win1[3]), a.auto('gemm'))
        self.gemm(items, 56, 6, 4, 2, hooks)
        a.auto('valu')
        self.ts("h_gemm")
        for t in range(4):
            for h in range(2):
                a(f"v_lshlrev_b32 v{80+4*t+2*h}, 16, v{vH+2*t+h}")
                a(f"v_and_b32 v{81+4*t+2*h}, 0xffff0000, v{vH+2*t+h}")
        for k in range(8):
            a(f"v_pk_add_f32 {V(acc+2*k,2)}, {V(acc+2*k,2)}, {V(80+2*k,2)}")
        a(f"v_pk_add_f32 {V(80,2)}, {V(acc,2)}, {V(acc+2,2)}")
        a(f"v_pk_mul_f32 {V(82,2)}, {V(acc,2)}, {V(acc,2)}")
        a(f"v_pk_fma_f32 {V(82,2)}, {V(acc+2,2)}, {V(acc+2,2)}, {V(82,2)}")
        for k in range(2, 8):
            a(f"v_pk_add_f32 {V(80,2)}, {V(80,2)}, {V(acc+2*k,2)}")
            a(f"v_pk_fma_f32 {V(82,2)}, {V(acc+2*k,2)}, {V(acc+2*k,2)}, {V(82,2)}")
        a(f"v_add_f32 v80, v80, v81")
        a(f"v_add_f32 v81, v82, v83")
        self.allred2(80, 81, 82)
        a(f"v_max_f32 v81, 0, v81")
        a.auto(None)
        a.flush()
        self.loc(sT0, sMT, 15, 0, 10, L_ST1)
        a(f"s_lshl_b32 s{sT1}, s{sC}, 3")
        a(f"s_add_u32 s{sT1}, s{sT1}, s{sT0}")
        a(f"v_lshlrev_b32 v38, 6, v{vI}")
        a(f"s_mov_b64 exec, 0xffff")
        self.lst(f"buffer_store_dwordx2 {V(80,2)}, v38, {srd(sWS)}, s{sT1} offen")
        a(f"s_mov_b64 exec, -1")
        a(f"v_lshl_add_u32 v38, v{vG}, 4, v38")
        for k in range(8):
            a(f"v_cvt_pk_bf16_f32 v{vH+k}, v{acc+2*k}, v{acc+2*k+1}")
        lp = a.label('Lst1'); ld = a.label('Lst1d')
        a(f"{lp}:")
        a(f"buffer_load_dwordx4 {V(84,4)}, v38, {srd(sWS)}, s{sT0} offen sc1")
        a(f"s_sub_u32 s{sSPIN}, s{sSPIN}, 1")
        a(f"s_cbranch_scc1 {ld}")
        a(f"v_max_u32 v39, v85, v87")
        a(f"v_cmp_eq_u32 vcc, -1, v39")
        a(f"s_cbranch_vccnz {lp}")
        a(f"{ld}:")
        a(f"s_max_i32 s{sSPIN}, s{sSPIN}, 0")
        a("s_waitcnt vmcnt(0)")
        a(f"v_pk_add_f32 {V(80,2)}, {V(84,2)}, {V(86,2)}")
        self.allred2(80, 81, 82)
        self.meanrstd(80, 81, 512)
        for k in range(8):
            a(f"v_pk_fma_f32 {V(acc+2*k,2)}, {V(acc+2*k,2)}, {V(80,2)}, {V(80,2)} op_sel:[0,1,0] op_sel_hi:[1,1,0]")
        for k in range(8):
            a(f"v_cvt_pk_bf16_f32 v{84+k}, v{acc+2*k}, v{acc+2*k+1}")
        a(f"s_lshl_b32 s{sT0}, s{sC}, 11")
        a(f"s_add_u32 s{sT0}, s{sT0}, s{sBM}")
        th = self.lst(f"buffer_store_dwordx4 {V(84,4)}, v{vL16}, {srd(sWS)}, s{sT0} offen\n"
                 f"buffer_store_dwordx4 {V(88,4)}, v{vL16}, {srd(sWS)}, s{sT0} offen offset:1024")
        self.loc(sT0, sMT, 7, 1, 7, L_F3)
        a(f"s_and_b32 s{sT1}, s{sMT}, 1")
        a(f"s_lshl_b32 s{sT1}, s{sT1}, 3")
        a(f"s_add_u32 s{sT1}, s{sT1}, s{sC}")
        a(f"s_lshl_b32 s{sT1}, s{sT1}, 2")
        a(f"s_add_u32 s{sT0}, s{sT0}, s{sT1}")
        self.flag(sT0, th)
        self.ts("hn_pub")

    def allred2(self, x, y, t):
        a = self.a
        a(f"v_permlane32_swap_b32 v{x}, v{y}")
        a(f"v_add_f32 v{x}, v{x}, v{y}")
        a(f"v_mov_b32 v{t}, v{x}")
        a(f"v_permlane16_swap_b32 v{x}, v{t}")
        a(f"v_add_f32 v{x}, v{x}, v{t}")
        a(f"v_mov_b32 v{y}, v{x}")
        a(f"v_permlane32_swap_b32 v{x}, v{y}")

    def meanrstd(self, s, q, n):
        a = self.a
        a(f"v_mul_f32 v{s}, {FH(-1.0/n)}, v{s}")
        a(f"v_mul_f32 v{q}, {FH(1.0/n)}, v{q}")
        a(f"v_fma_f32 v{q}, -v{s}, v{s}, v{q}")
        a(f"v_max_f32 v{q}, 0, v{q}")
        a(f"v_add_f32 v{q}, {FH(1e-5)}, v{q}")
        a(f"v_rsq_f32 v{q}, v{q}")
        a(f"v_mul_f32 v{s}, v{s}, v{q}")

    def gelu(self, r, n, tmp, vC1):
        a = self.a
        for c0 in range(0, n, 16):
            m = min(16, n - c0)
            for k in range(0, m, 2):
                a(f"v_pk_mul_f32 {V(tmp+k,2)}, {V(r+c0+k,2)}, {V(r+c0+k,2)}")
            for k in range(0, m, 2):
                a(f"v_pk_fma_f32 {V(tmp+k,2)}, {V(tmp+k,2)}, {S(sC2,2)}, {V(vC1,2)}")
            for k in range(0, m, 2):
                a(f"v_pk_mul_f32 {V(tmp+k,2)}, {V(tmp+k,2)}, {V(r+c0+k,2)}")
            for k in range(m):
                a(f"v_exp_f32 v{tmp+k}, v{tmp+k}")
            for k in range(0, m, 2):
                a(f"v_pk_add_f32 {V(tmp+k,2)}, {V(tmp+k,2)}, {S(sONE,2)}")
            for k in range(m):
                a(f"v_rcp_f32 v{tmp+k}, v{tmp+k}")
            for k in range(0, m, 2):
                a(f"v_pk_mul_f32 {V(r+c0+k,2)}, {V(r+c0+k,2)}, {V(tmp+k,2)}")

    def ch_wout(self, part, gap=GAP):
        a = self.a
        col = lambda d: a(f"s_lshl_b32 s{d}, s{sC}, 7")
        if part == 0:
            return self.ch_image('quadP', sWOUT, 1024, col, R0, 0, 12, 'wout0', gap)
        return self.ch_image('quadP', sWOUT, 1024, col, R1, 12, 16, 'wout1', gap, voffs=False)

    def p2b(self):
        a = self.a
        self.barrier()
        def idle():
            a.bg(self.ch_wsp(2, 18, self.ch_wout(0) + self.ch_wout(1)))
            a.flush()
        a.ifelse(f"s_cmp_ge_u32 s{sP}, 14", self.p2b_body, idle)

    def p2b_body(self):
        a = self.a
        vA = 128; z2 = 40; z1 = 72; ring = 104; SCR2 = R0 + 49152
        win2 = self.ch_image('quadP', sWIN, 3584, lambda d: a(f"s_lshl_b32 s{d}, s{sP}, 7"), R1, 0, 16, 'win2', voffs=False)
        a.bg(self.ch_wsp(2, 4)); a.flush()
        a(f"v_mov_b32 v32, {FH(self.c1)}")
        a(f"v_mov_b32 v33, {FH(self.c1)}")
        self.tr_addrs(vTR, R0)
        self.loc(sT0, sKB, 7, 0, 7, L_F3)
        a(f"v_lshl_add_u32 v38, v{vI}, 2, s{sT0}")
        a(f"s_mov_b32 s{sT0}, s{sBK}")
        a(f"s_add_u32 s{sT1}, s{sBK}, {BST}")
        self.poll(38, 39, 1)
        self.ts("hn_rdy")
        def lda(k):
            ks, m = k >> 1, k & 1
            if ks and ks % 4 == 0:
                a(f"s_add_u32 s{sT0+m}, s{sT0+m}, 4096")
            a(f"buffer_load_dwordx4 {V(vA+4*k,4)}, v{vL16}, {srd(sWS)}, s{sT0+m} offen offset:{(ks%4)*1024} sc1")
        for k in range(8):
            lda(k)
        items = []; hooks = {}
        for ks in range(16):
            for u in range(4):
                k = 2*ks + (u >> 1) + 8
                if (u & 1) and k < 32:
                    hooks[4*ks+u] = (lambda k: (lambda: lda(k)))(k)
                ms = []
                for m in range(2):
                    d = V(z2+8*u+4*m, 4)
                    ms.append(f"v_mfma_f32_16x16x32_bf16 {d}, {V(vA+8*ks+4*m,4)}, {{b}}, {d if ks else 0}")
                items.append((vTR+u, ks*4096, ms))
        hooks[48] = lambda: (a.bg(sum(win2, []) + self.ch_wsp(4, 6)), a.auto('gemm'))
        self.gemm(items, ring, 6, 4, 2, hooks)
        self.ts("z2_gemm")
        a.auto('valu')
        self.gelu(z2, 32, ring, 32)
        sm = 104; sq = 112
        for k in range(0, 8, 2):
            a(f"v_pk_add_f32 {V(sm+k,2)}, {V(z2+k,2)}, {V(z2+8+k,2)}")
            a(f"v_pk_mul_f32 {V(sq+k,2)}, {V(z2+k,2)}, {V(z2+k,2)}")
        for u in range(1, 4):
            for k in range(0, 8, 2):
                if u > 1:
                    a(f"v_pk_add_f32 {V(sm+k,2)}, {V(sm+k,2)}, {V(z2+8*u+k,2)}")
                a(f"v_pk_fma_f32 {V(sq+k,2)}, {V(z2+8*u+k,2)}, {V(z2+8*u+k,2)}, {V(sq+k,2)}")
        for base in (sm, sq):
            for k in range(4):
                a(f"v_add_f32_dpp v{base+k}, v{base+k}, v{base+k} row_ror:8 row_mask:0xf bank_mask:0x3")
            for k in range(4):
                a(f"v_add_f32_dpp v{base+k}, v{base+4+k}, v{base+4+k} row_ror:8 row_mask:0xf bank_mask:0xc")
        for base in (sm, sq):
            for k in range(2):
                a(f"v_add_f32_dpp v{base+k}, v{base+k}, v{base+k} row_half_mirror row_mask:0xf bank_mask:0x5")
        for base in (sm, sq):
            for k in range(2):
                a(f"v_add_f32_dpp v{base+k}, v{base+2+k}, v{base+2+k} row_half_mirror row_mask:0xf bank_mask:0xa")
        for qp in ("[1,0,3,2]", "[2,3,0,1]"):
            for r in (sm, sm+1, sq, sq+1):
                a(f"v_add_f32_dpp v{r}, v{r}, v{r} quad_perm:{qp} row_mask:0xf bank_mask:0xf")
        a.auto(None)
        a(f"v_and_b32 v{vT}, 1, v{vLANE}")
        a(f"v_cmp_eq_u32 vcc, 1, v{vT}")
        a(f"v_lshrrev_b32 v38, 2, v{vLANE}")
        a(f"v_lshl_or_b32 v38, v38, 1, v{vT}")
        a(f"v_cndmask_b32 v34, v{sm}, v{sm+1}, vcc")
        a(f"v_cndmask_b32 v35, v{sq}, v{sq+1}, vcc")
        a(f"v_lshlrev_b32 v38, 7, v38")
        a(f"v_max_f32 v35, 0, v35")
        self.loc(sU0, sKB, 7, 0, 12, L_ST2)
        a(f"s_lshl_b32 s{sT1}, s{sP}, 3")
        a(f"s_add_u32 s{sT0}, s{sU0}, s{sT1}")
        a(f"s_mov_b32 exec_lo, 0x33333333")
        a(f"s_mov_b32 exec_hi, 0x33333333")
        self.lst(f"buffer_store_dwordx2 {V(34,2)}, v38, {srd(sWS)}, s{sT0} offen")
        a(f"s_mov_b64 exec, -1")
        self.ts("st2_pub")
        a.flush_until(lambda: 'win2' in self.tok)
        a.wait(self.tok['win2'])
        self.barrier()
        for t in range(4):
            a(f"v_add_u32 v{vTR+t}, {R1}, v{vTR+t}")
        a(f"v_lshlrev_b32 v38, 6, v{vLANE}")
        KS_LD, KS_FIN = 4, 7
        g0 = vA
        def ld_st2():
            for k in range(4):
                a(f"buffer_load_dwordx4 {V(g0+4*k,4)}, v38, {srd(sWS)}, s{sU0} offen offset:{16*k} sc1")
        def ck_st2():
            a(f"v_and_b32 v{vT}, 1, v{vLANE}")
            a(f"v_cmp_eq_u32 vcc, 1, v{vT}")
            a(f"v_max_u32 v39, v{g0+1}, v{g0+3}")
            for k in range(4):
                a(f"v_cndmask_b32_e64 v{g0+12+k}, v{g0+12+k}, 0, vcc")
            for k in range(1, 4):
                a(f"v_max3_u32 v39, v39, v{g0+1+4*k}, v{g0+3+4*k}")
            a(f"v_cmp_eq_u32 vcc, -1, v39")
        def fin_z2():
            a.auto(None)
            self.retry(ld_st2, ck_st2)
            for k in range(4):
                a(f"v_pk_add_f32 {V(g0+2*k,2)}, {V(g0+2*k,2)}, {V(g0+8+2*k,2)}")
            for k in range(2):
                a(f"v_pk_add_f32 {V(g0+2*k,2)}, {V(g0+2*k,2)}, {V(g0+4+2*k,2)}")
            a(f"v_pk_add_f32 {V(g0,2)}, {V(g0,2)}, {V(g0+2,2)}")
            a(f"v_cmp_eq_u32 vcc, 1, v{vT}")
            a(f"v_lshlrev_b32 v{vT}, 7, v{vT}")
            for r in (g0, g0+1):
                a(f"v_add_f32_dpp v{r}, v{r}, v{r} quad_perm:[1,0,3,2] row_mask:0xf bank_mask:0xf")
            a(f"v_lshrrev_b32 v38, 1, v{vLANE}")
            a(f"v_lshl_add_u32 v{vT}, v38, 2, v{vT}")
            a(f"s_lshl_b32 s{sT0}, s{sWV}, 8")
            a(f"s_add_u32 s{sT0}, s{sT0}, {SCR2}")
            self.meanrstd(g0, g0+1, 896)
            a(f"v_add_u32 v{vT}, s{sT0}, v{vT}")
            a(f"v_cndmask_b32 v{g0}, v{g0}, v{g0+1}, vcc")
            a(f"v_lshl_add_u32 v38, v{vG}, 5, s{sT0}")
            a(f"ds_write_b32 v{vT}, v{g0}")
            for k in range(2):
                a(f"ds_read_b128 {V(g0+4+4*k,4)}, v38 offset:{16*k}")
                a(f"ds_read_b128 {V(g0+12+4*k,4)}, v38 offset:{128+16*k}")
            a(f"s_lshl_b32 s{sT0}, s{sP}, 8")
            a(f"s_add_u32 s{sT0}, s{sT0}, s{sKB}")
            a(f"s_lshl_b32 s{sT0}, s{sT0}, 10")
            a(f"s_add_u32 s{sT0}, s{sT0}, {Z2_OFF}")
            for u in range(4):
                for k in range(0, 8, 2):
                    a(f"v_pk_fma_f32 {V(z2+8*u+k,2)}, {V(z2+8*u+k,2)}, {V(g0+12+k,2)}, {V(g0+4+k,2)}")
                for k in range(4):
                    a(f"v_cvt_pk_bf16_f32 v{g0+20+4*u+k}, v{z2+8*u+2*k}, v{z2+8*u+2*k+1}")
                self.tok['z2st'] = a(f"buffer_store_dwordx4 {V(g0+20+4*u,4)}, v{vL16}, {srd(sWS)}, s{sT0} offen sc1")
                if u < 3:
                    a(f"s_add_u32 s{sT0}, s{sT0}, 65536")
            self.ts("z2_st")
            a.auto('gemm')
        items = []
        for ks in range(16):
            for u in range(4):
                ms = []
                for m in range(2):
                    d = V(z1+8*u+4*m, 4)
                    ms.append(f"v_mfma_f32_16x16x32_bf16 {d}, {{b}}, {V(vA+8*ks+4*m,4)}, {d if ks else 0}")
                items.append((vTR+u, ks*4096, ms))
        a.bg(self.ch_wsp(6, 12, self.ch_wout(0)))
        a.auto('gemm')
        self.gemm(items, ring, 6, 4, 2, {4*KS_LD: ld_st2, 4*KS_FIN: fin_z2})
        a.auto(None)
        self.ts("z1_gemm")
        a.wait(self.tok['z2st'])
        self.barrier()
        def arrive():
            a(f"s_lshl_b32 s{sT0}, s{sP}, 7")
            a(f"s_add_u32 s{sT0}, s{sT0}, {F4_OFF}")
            a(f"v_mov_b32 v{vT}, 1")
            a("s_mov_b64 exec, 1")
            a(f"buffer_atomic_add v{vT}, off, {srd(sWS)}, s{sT0}")
            a("s_mov_b64 exec, -1")
        a.ifonly(f"s_cmp_lg_u32 s{sWV}, 0", arrive)
        self.ts("z2_pub")
        a.bg(self.ch_wsp(12, 18, self.ch_wout(1)))
        a.auto('valu')
        self.gelu(z1, 32, ring, 32)
        for u in range(4):
            for m in range(2):
                for h in range(2):
                    r = z1 + 8*u + 4*m + 2*h
                    a(f"v_cvt_pk_bf16_f32 v{128+8*m+2*u+h}, v{r}, v{r+1}")
        a.auto(None)
        a(f"s_lshl_b32 s{sT0}, s{sP}, 11")
        a(f"s_add_u32 s{sT0}, s{sT0}, s{sBK}")
        a(f"s_add_u32 s{sT1}, s{sT0}, {BST}")
        tz = self.lst("\n".join(f"buffer_store_dwordx4 {V(128+8*m+4*pr,4)}, v{vL16}, {srd(sWS)}, s{sT0+m} offen offset:{1024*pr}" for m in range(2) for pr in range(2)))
        a.flush(8)
        self.loc(sT0, sKB, 7, 0, 7, L_F4B)
        a(f"s_lshl_b32 s{sT1}, s{sP}, 2")
        a(f"s_add_u32 s{sT0}, s{sT0}, s{sT1}")
        self.flag(sT0, tz)
        self.ts("z1_pub")
        a.flush()

    def p3(self):
        a = self.a
        vZ1 = 40; vB = 34
        ring = 128; acc = 64; vBA = 36; vW = 35; vR = 37; red = 96; vY = 112
        self.ts("wsp_rdy")
        a(f"s_mul_i32 s{sT0}, s{sC}, 7")
        a(f"v_min_u32 v32, 6, v{vLANE}")
        a(f"v_add_u32 v32, s{sT0}, v32")
        a(f"v_lshrrev_b32 v32, 2, v32")
        self.rowoff(38, vT)
        a(f"v_lshlrev_b32 v38, 1, v38")
        a(f"buffer_load_ushort v{vB}, v38, {srd(sBSP)}, 0 offen")
        a(f"s_lshl_b32 s{sT0}, s{sWV}, 12")
        a(f"s_add_u32 s{sT0}, s{sT0}, {STG}")
        a(f"v_add_u32 v{vW}, s{sT0}, v{vL16}")
        a(f"s_lshl_b32 s{sT0}, s{sWV}, 10")
        a(f"s_add_u32 s{sT0}, s{sT0}, {STG}")
        a(f"v_add_u32 v{vR}, s{sT0}, v{vL16}")
        a(f"s_lshl_b32 s{sT3}, s{sWV}, 14")
        a(f"s_add_u32 s{sT3}, s{sT3}, {Z2_OFF}")
        a(f"s_lshr_b32 s{sU0}, s{sN}, 1")
        a(f"s_lshl_b32 s{sU0}, s{sU0}, 10")
        a(f"s_and_b32 s{sT1}, s{sN}, 1")
        a(f"s_lshl_b32 s{sT1}, s{sT1}, 3")
        a(f"s_add_u32 s{sU0}, s{sU0}, s{sT1}")
        a(f"s_add_u32 s{sU0}, s{sU0}, s{sBM}")
        a(f"s_lshl_b32 s{sU1}, s{sN+1}, 9")
        a(f"s_add_u32 s{sU1}, s{sU1}, s{sBM}")
        def setb(n):
            a(f"s_lshl_b32 s{sT0}, s{sN+n}, 16")
            a(f"s_add_u32 s{sT0}, s{sT0}, s{sT3}")
            a(f"v_add_u32 v{vBA}, s{sT0}, v{vL16}")
        setb(0)
        def waitz2():
            a(f"v_lshlrev_b32 v38, 7, v32")
            a(f"v_add_u32 v38, {F4_OFF}, v38")
            self.poll(38, 39, 15)
        a.ifonly(f"s_cmp_lg_u32 s{sWV}, 0", waitz2)
        a("s_waitcnt vmcnt(0)")
        self.barrier()
        self.ts("z2_rdy")
        def loadb(s):
            a(f"buffer_load_dwordx4 {V(ring+4*s,4)}, v{vBA}, {srd(sWS)}, s{sROT+(s>>1)} offen offset:{(s&1)*1024} sc1")
        def ld_f4b():
            a(f"buffer_load_dword v39, v33, {srd(sWS)}, 0 offen sc1")
        def ld_z1():
            self.retry(ld_f4b, lambda: a(f"v_cmp_ne_u32 vcc, 1, v39"))
            a(f"buffer_load_dwordx2 {V(vZ1,2)}, v{vL16}, {srd(sWS)}, s{sU0} offen sc1")
            for pr in range(3):
                a(f"buffer_load_dwordx4 {V(vZ1+2+4*pr,4)}, v{vL16}, {srd(sWS)}, s{sU1} offen offset:{1024*pr} sc1")
        def wr(n):
            return [f"ds_write_b128 v{vW}, {V(acc+16*(n&1)+4*mt,4)} offset:{(n&1)*16384+mt*1024}" for mt in range(4)]
        def rd(n):
            return [f"ds_read_b128 {V(red+4*w,4)}, v{vR} offset:{(n&1)*16384+w*4096}" for w in range(4)]
        def fin(n):
            res = []
            for k in range(4):
                res.append(f"v_add_f32 v{red+k}, v{red+k}, v{red+4+k}")
                res.append(f"v_add_f32 v{red+8+k}, v{red+8+k}, v{red+12+k}")
            for h in range(2):
                res.append(f"v_lshlrev_b32 v{red+4+2*h}, 16, v{vZ1+2*n+h}")
                res.append(f"v_and_b32 v{red+5+2*h}, 0xffff0000, v{vZ1+2*n+h}")
            for k in range(4):
                res.append(f"v_add_f32 v{red+k}, v{red+k}, v{vB}")
            for k in range(4):
                res.append(f"v_add_f32 v{red+k}, v{red+k}, v{red+8+k}")
            for k in range(4):
                res.append(f"v_mul_f32 v{red+k}, v{red+k}, v{red+4+k}")
            half = 0 if n == 0 else (n - 1) & 1
            for h in range(2):
                res.append(f"v_cvt_pk_bf16_f32 v{vY+2*half+h}, v{red+2*h}, v{red+2*h+1}")
            return res
        def sty(n):
            if n == 0:
                return self.lst(f"buffer_store_dwordx2 {V(vY,2)}, v{vL16}, {srd(sWS)}, s{sU0} offen")
            elif (n - 1) & 1:
                return self.lst(f"buffer_store_dwordx4 {V(vY,4)}, v{vL16}, {srd(sWS)}, s{sU1} offen offset:{1024*((n-1)>>1)}")
        LA = 10
        for s in range(LA):
            loadb(s)
        a(f"v_lshlrev_b32 v{vB}, 16, v{vB}")
        self.loc(sT0, sMT, 7, 1, 7, L_F4B)
        a(f"v_lshl_add_u32 v33, v32, 2, s{sT0}")
        for n in range(7):
            fill = []
            for s in range(16):
                nxt = 16*n + s + LA
                if nxt % 16 == 0 and nxt < 112:
                    setb(nxt // 16)
                if n == 0 and s == 2: ld_f4b()
                if n == 0 and s == 13: ld_z1()
                if n > 0:
                    if s == 2: fill += wr(n - 1)
                    if s == 6:
                        self.barrier()
                        fill += rd(n - 1)
                    if s == 9: fill += fin(n - 1)
                    if s == 15: sty(n - 1)
                for mt in range(4):
                    d = V(acc+16*(n&1)+4*mt, 4)
                    a(f"v_mfma_f32_16x16x32_bf16 {d}, {V(ring+4*s,4)}, {A(16*s+4*mt,4)}, {d if s else 0}")
                    if mt == 0:
                        if nxt < 112: loadb(nxt % 16)
                    else:
                        for _ in range(2):
                            if fill: a(fill.pop(0))
            assert not fill
        self.ts("p3_gemm")
        self.tr_addrs(vTR, R0)
        for t in wr(6): a(t)
        for t in range(4):
            a(f"v_add_u32 v{56+t}, {R1}, v{vTR+t}")
        self.barrier()
        for t in rd(6): a(t)
        for t in fin(6): a(t)
        self.ty = sty(6)

    def p4(self):
        a = self.a
        vA = 128; acc = 64
        def baddr(ks, t):
            return (vTR + t, ks*4096) if ks < 12 else (56 + t, (ks-12)*4096)
        def preload(k0, k1):
            for k in range(k0, k1):
                ad, off = baddr(k >> 1, k & 1)
                for h in range(2):
                    a(f"ds_read_b64_tr_b16 {A(4*k+2*h,2)}, v{ad} offset:{off+h*2048}")
        preload(0, 7)
        self.loc(sT1, sMT, 15, 0, 7, L_F5)
        a(f"s_lshl_b32 s{sT0}, s{sC}, 2")
        a(f"s_add_u32 s{sT0}, s{sT0}, s{sT1}")
        self.flag(sT0, self.ty)
        self.ts("y_pub")
        preload(7, 28)
        a(f"v_and_b32 v38, 7, v{vLANE}")
        a(f"v_lshl_add_u32 v38, v38, 2, s{sT1}")
        a(f"s_mov_b32 s{sT0}, s{sBM}")
        self.poll(38, 39, 1)
        self.ts("y_rdy")
        def lda(ks):
            if ks and ks % 4 == 0:
                a(f"s_add_u32 s{sT0}, s{sT0}, 4096")
            a(f"buffer_load_dwordx4 {V(vA+4*ks,4)}, v{vL16}, {srd(sWS)}, s{sT0} offen offset:{(ks%4)*1024} sc1")
        for ks in range(8):
            lda(ks)
        preload(28, 56)
        for t in range(4):
            for h in range(2):
                a(f"v_lshlrev_b32 v{acc+4*t+2*h}, 16, v{vH+2*t+h}")
                a(f"v_and_b32 v{acc+4*t+2*h+1}, 0xffff0000, v{vH+2*t+h}")
        items = []; hooks = {}
        for ks in range(28):
            if ks + 8 < 28:
                hooks[4*ks+1] = (lambda k: (lambda: lda(k)))(ks + 8)
            for t in range(4):
                d = V(acc+4*t, 4)
                m = [f"v_mfma_f32_16x16x32_bf16 {d}, {{b}}, {V(vA+4*ks,4)}, {d}"]
                items.append((None, A(4*(2*ks+t),4), m) if t < 2 else baddr(ks, t) + (m,))
        self.gemm(items, 80, 6, 4, 2, hooks)
        self.rowoff(38, vT)
        a(f"v_lshlrev_b32 v38, 10, v38")
        a(f"v_lshl_add_u32 v38, v{vG}, 3, v38")
        a(f"s_lshl_b32 s{sT0}, s{sC}, 7")
        for t in range(4):
            for h in range(2):
                a(f"v_cvt_pk_bf16_f32 v{80+2*t+h}, v{acc+4*t+2*h}, v{acc+4*t+2*h+1}")
            a(f"buffer_store_dwordx2 {V(80+2*t,2)}, v38, {srd(sOUT)}, s{sT0} offen offset:{32*t}")
        self.ts("end")

    def build(self):
        a = self.a
        self.setup()
        for name, fn in (('p1', self.p1), ('p2a', self.p2a), ('p2b', self.p2b), ('p3', self.p3), ('p4', self.p4)):
            fn()
            if self.stop == name:
                break
        if self.prof:
            a(f"s_lshl_b32 s{sT0}, s2, 10")
            a(f"s_lshl_b32 s{sT1}, s{sWV}, 8")
            a(f"s_add_u32 s{sT0}, s{sT0}, s{sT1}")
            a(f"s_add_u32 s{sT0}, s{sT0}, {TS_OFF}")
            a(f"v_writelane_b32 v{vTS}, s{sSPIN}, 62")
            a(f"v_writelane_b32 v{vTS}, s{sMODE}, 63")
            a(f"v_lshlrev_b32 v19, 2, v{vLANE}")
            a(f"buffer_store_dword v{vTS}, v19, {srd(sWS)}, s{sT0} offen")
        if self.padfrom:
            for o in self.opt:
                if o.startswith('padxcc'):
                    a(f"s_getreg_b32 s94, hwreg(HW_REG_XCC_ID)")
                    a(f"s_and_b32 s94, s94, 7")
                    a(f"s_cmp_lg_u32 s94, {int(o[6:])}")
                    a(f"s_cbranch_scc1 L_end")
            a("L_pad:")
            a("s_memrealtime s[94:95]")
            a("s_waitcnt lgkmcnt(0)")
            a("s_sub_u32 s94, s94, s96")
            a("s_cmp_lt_u32 s94, 6000")
            a("s_cbranch_scc1 L_pad")
        if self.dbgts:
            def dump():
                a(f"v_readlane_b32 s{sT0}, v{vTS}, 0")
                a(f"v_subrev_u32 v{vTS}, s{sT0}, v{vTS}")
                a(f"v_cmp_lt_u32 vcc, 6, v{vLANE}")
                a(f"v_cndmask_b32_e64 v38, 1, 3, vcc")
                a(f"v_add_u32 v38, v38, v{vLANE}")
                a(f"v_lshlrev_b32 v38, 2, v38")
                a(f"s_mov_b64 exec, 0x1ffe")
                a(f"buffer_store_dword v{vTS}, v38, {srd(sDBG)}, 0 offen")
                a(f"s_mov_b64 exec, -1")
            a(f"s_lshl_b32 s{sT0}, s2, 2")
            a(f"s_add_u32 s{sT0}, s{sT0}, s{sWV}")
            a.ifonly(f"s_cmp_lg_u32 s{sT0}, {4*100}", dump)
        a("L_end:")
        a("s_endpgm")
        body = a.finish()
        ref = open('cdna_kernels/' + NAME + '.s.ref').read().split('\n')
        hdr = [l for l in ref if l.startswith(';') and '@launch' not in l]
        k = NAME + "_kernel"
        txt = "\n".join(hdr) + f"\n; @launch grid=(256,1,1) block=(256,1,1) lds={LDS_SIZE}\n"
        txt += '.amdgcn_target "amdgcn-amd-amdhsa--gfx950"\n.text\n'
        txt += f".globl {k}\n.p2align 8\n.type {k},@function\n{k}:\n" + body
        txt += f""".section .rodata,"a"
.p2align 6
.amdhsa_kernel {k}
  .amdhsa_next_free_vgpr 512
  .amdhsa_next_free_sgpr 102
  .amdhsa_accum_offset 256
  .amdhsa_group_segment_fixed_size 0
  .amdhsa_kernarg_size 96
  .amdhsa_user_sgpr_count 2
  .amdhsa_user_sgpr_kernarg_segment_ptr 1
  .amdhsa_system_sgpr_workgroup_id_x 1
.end_amdhsa_kernel
"""
        return txt


if __name__ == "__main__":
    import argparse, json
    ap = argparse.ArgumentParser()
    ap.add_argument('-o', default='cdna_kernels/' + NAME + '.s')
    ap.add_argument('--prof', action='store_true')
    ap.add_argument('--slow', action='store_true')
    ap.add_argument('--stop')
    ap.add_argument('--padfrom')
    ap.add_argument('--dbgts')
    ap.add_argument('--opt', default='')
    args = ap.parse_args()
    g = Gen(padfrom=args.padfrom, prof=args.prof, stop=args.stop, force_slow=args.slow, dbgts=args.dbgts.split(',') if args.dbgts else None, opt=[o for o in args.opt.split(',') if o])
    txt = g.build()
    if args.prof:
        txt = txt.replace("; @launch", "; tsnames " + ",".join(g.tsnames) + "\n; @launch", 1)
    open(args.o, 'w').write(txt)
    print("wrote", args.o, len(txt), "bytes,", txt.count("\n"), "lines")
```
